```python
import torch

def _softmax(x, axis=-1):
    return torch.softmax(x, dim=axis)
def _gelu(x):
    return torch.nn.functional.gelu(x, approximate="tanh")
def _silu(x):
    return torch.nn.functional.silu(x)
def _sigmoid(x):
    return torch.sigmoid(x)
def _layernorm(x, axis=-1, eps=1e-5):
    m = x.mean(dim=axis, keepdim=True)
    v = x.var(dim=axis, keepdim=True, unbiased=False)
    return (x - m) / torch.sqrt(v + eps)
def _scatter_add(tgt, idx, src, axis=0):
    return tgt.clone().index_add_(axis, idx, src)
def _segment_sum(src, seg, n):
    out = torch.zeros((n,) + src.shape[1:], dtype=src.dtype)
    return out.index_add_(0, seg, src)
def _pad(x, pw):
    flat = tuple(v for pair in reversed(pw) for v in pair)
    return torch.nn.functional.pad(x, flat)

kernel_name = 'parallel_sum__spectral_gfnet__dense_activation_mish__prompt'

def setup_inputs():

    _w = (lambda a: (lambda t: t.to(torch.bfloat16) if t.is_floating_point() else t)(torch.as_tensor(a)))
    def _A_setup():
        B, S, D = 1, 2048, 1024
        Df = D // 2 + 1
        return {
            "x": _w((lambda *s: torch.randn(*s, dtype=torch.bfloat16) * 0.05)(B, S, D)),
            "w_r": _w((lambda *s: torch.randn(*s, dtype=torch.bfloat16) * 0.8)(S, Df) * 0.02),
            "w_i": _w((lambda *s: torch.randn(*s, dtype=torch.bfloat16) * 0.8)(S, Df) * 0.02),
        }
    _A_in = _A_setup()

    def _B_setup():
        B, S, D, F = 1, 2048, 1024, 3584
        return {
            "x": _w((lambda *s: torch.randn(*s, dtype=torch.bfloat16) * 0.05)(B, S, D)),
            "w1": _w((lambda *s: torch.randn(*s, dtype=torch.bfloat16) * 0.8)(D, F) * (D ** -0.5)),
            "b1": _w((lambda *s: torch.randn(*s, dtype=torch.bfloat16) * 0.2)(F)),
            "w2": _w((lambda *s: torch.randn(*s, dtype=torch.bfloat16) * 0.1)(F, D) * (F ** -0.5)),
        }
    _B_in = _B_setup()

    return {
        "A_x": _A_in["x"],
        "A_w_r": _A_in["w_r"],
        "A_w_i": _A_in["w_i"],
        "B_x": _B_in["x"],
        "B_w1": _B_in["w1"],
        "B_b1": _B_in["b1"],
        "B_w2": _B_in["w2"],
    }

def reference(A_x, A_w_r, A_w_i, B_x, B_w1, B_b1, B_w2):
    def _A_ref(x, w_r, w_i):
        B, S, D = x.shape
        X = (lambda x, axes=(-2,-1): torch.fft.rfft2(x.float(), dim=axes))(x, axes=(-2, -1))
        W = w_r + 1j * w_i
        X = X * W
        y = (lambda x, s, axes=(-2,-1): torch.fft.irfft2(x, s=s, dim=axes).to(torch.bfloat16))(X, (S, D), axes=(-2, -1))
        return y

    def _B_ref(x, w1, b1, w2):
        h = torch.einsum("bsd,df->bsf", x, w1) + b1
        sp = torch.log1p(torch.exp(-torch.abs(h))) + torch.where(h > 0, h, torch.zeros_like(h))
        act = h * torch.tanh(sp)
        return torch.einsum("bsf,fd->bsd", act, w2)

    x = A_x
    xn = _layernorm(x, axis=-1)
    return x + _A_ref(xn, A_w_r, A_w_i) + _B_ref(xn, B_w1, B_b1, B_w2)
```

```python
class Asm:
    def __init__(self):
        self.lines = []
        self.uid = 0
    def __call__(self, s):
        for ln in s.strip("\n").split("\n"):
            ln = ln.strip()
            if ln:
                self.lines.append("    " + ln)
    def label(self, l):
        self.lines.append(l + ":")
    def raw(self, s):
        self.lines.append(s)
    def newlabel(self, p="L"):
        self.uid += 1
        return f"{p}_{self.uid}"
    def text(self):
        return "\n".join(self.lines) + "\n"

def vr(b, n):
    return f"v{b}" if n == 1 else f"v[{b}:{b+n-1}]"
def sr(b, n):
    return f"s{b}" if n == 1 else f"s[{b}:{b+n-1}]"

def srd(a, d, lo, hi, nbytes, off=0):
    if off:
        a(f"s_add_u32 s{d}, s{lo}, {off}")
        a(f"s_addc_u32 s{d+1}, s{hi}, 0")
    else:
        a(f"s_mov_b32 s{d}, s{lo}")
        a(f"s_mov_b32 s{d+1}, s{hi}")
    a(f"s_mov_b32 s{d+2}, {nbytes}")
    a(f"s_mov_b32 s{d+3}, 0x00020000")

def kernel_begin(a, name):
    a.raw(f".globl {name}")
    a.raw(".p2align 8")
    a.raw(f".type {name},@function")
    a.label(name)

def descriptor(name, vgpr, sgpr=102, accum=None):
    if accum is None:
        accum = min(256, (vgpr + 3) // 4 * 4)
    return f""".p2align 6
.amdhsa_kernel {name}
  .amdhsa_next_free_vgpr {vgpr}
  .amdhsa_next_free_sgpr {sgpr}
  .amdhsa_accum_offset {accum}
  .amdhsa_group_segment_fixed_size 0
  .amdhsa_kernarg_size 80
  .amdhsa_user_sgpr_count 2
  .amdhsa_user_sgpr_kernarg_segment_ptr 1
  .amdhsa_system_sgpr_workgroup_id_x 1
.end_amdhsa_kernel
"""

def interleave(main, fill, start=0, per=1):
    out = []
    fi = 0
    for i, m in enumerate(main):
        out.append(m)
        if i >= start:
            for _ in range(per):
                if fi < len(fill):
                    out.append(fill[fi]); fi += 1
    out.extend(fill[fi:])
    return out
```

```python
from asmlib import *
from layout import *
import tables as T
from k0 import table_srd, load_set, twiddle_pack, mm

def gen_colfft(a, name, opt=None):
    kernel_begin(a, name)
    L_end = name + "_end"
    a(f"""
    s_cmp_ge_u32 s2, 256
    s_cbranch_scc1 {L_end}
    s_load_dwordx2 s[46:47], s[0:1], 72     ; ws
    v_lshrrev_b32 v2, 6, v0
    v_and_b32 v1, 63, v0                    ; lane
    s_nop 0
    v_readfirstlane_b32 s3, v2              ; wave
    v_lshlrev_b32 v3, 4, v1                 ; lane*16
    """)
    table_srd(a, 4, 50)
    a(f"""
    s_lshl_b32 s48, s2, 2
    s_add_u32 s48, s48, s3
    s_lshr_b32 s49, s48, 9                  ; ab
    s_lshl_b32 s52, s49, 13                 ; ab*8192
    s_lshl_b32 s53, s48, 12                 ; job*4096
    """)
    sets = {}
    sg = 54
    for nm, dep in (("F", 1), ("TWF_0", 1), ("F", 0), ("TWI_0", 1), ("F_b", 1)):
        if dep:
            a(f"s_add_u32 s{sg}, s52, {T.SETS[nm]}")
            a(f"s_add_u32 s{sg+1}, s52, {T.SETS[nm]+4096}")
        else:
            a(f"s_mov_b32 s{sg}, {T.SETS[nm]}")
            a(f"s_mov_b32 s{sg+1}, {T.SETS[nm]+4096}")
        sg += 2
    a("s_waitcnt lgkmcnt(0)")
    srd(a, 24, 46, 47, 4 * MB, P_OFF)
    srd(a, 28, 46, 47, 4 * MB, WT_OFF)
    srd(a, 32, 46, 47, 4 * MB, Z_OFF)
    IN = 16; M1 = 32; TWF = 64; F = 96; W = 128; TWI = 144; M1T = 176; Dr = 208; Di = 224; PKD = 240
    for j in range(4):
        a(f"buffer_load_dwordx4 v[{IN+4*j}:{IN+4*j+3}], v3, s[24:27], s53 offen offset:{j*1024}")
    load_set(a, M1, 3, 4, ("s54", "s55"), 0)
    load_set(a, TWF, 3, 4, ("s56", "s57"), 0)
    load_set(a, F, 3, 4, ("s58", "s59"), 0)
    for j in range(4):
        a(f"buffer_load_dwordx4 v[{W+4*j}:{W+4*j+3}], v3, s[28:31], s53 offen offset:{j*1024}")
    load_set(a, TWI, 3, 4, ("s60", "s61"), 0)
    load_set(a, M1T, 3, 4, ("s62", "s63"), 0)
    a(f"""
    s_bfe_u32 s64, s48, 0x40005             ; k1
    s_and_b32 s65, s48, 31                  ; k2
    s_and_b32 s66, s64, 1
    s_lshl_b32 s66, s66, 8
    s_lshr_b32 s64, s64, 1
    s_lshl_b32 s64, s64, 5
    s_add_u32 s64, s64, s65
    s_add_u32 s64, s64, s66                 ; cidx
    s_bfe_u32 s65, s64, 0x10002
    s_lshl_b32 s65, s65, 4                  ; swz 16
    s_lshl_b32 s64, s64, 7                  ; cidx*128
    s_lshl_b32 s66, s49, 16
    s_add_u32 s64, s64, s66
    s_add_u32 s67, s64, s65
    s_xor_b32 s65, s65, 16
    s_add_u32 s68, s64, s65                 ; second
    v_and_b32 v4, 31, v1
    v_lshlrev_b32 v4, 17, v4
    v_lshrrev_b32 v5, 5, v1
    v_lshl_add_u32 v12, v5, 5, v4
    s_waitcnt vmcnt(36)
    """)
    mm(a, Dr, IN, M1)
    mm(a, Di, IN, M1 + 16)
    a("s_waitcnt vmcnt(20)")
    a("s_nop 10")
    twiddle_pack(a, Dr, Di, TWF, TWF + 16, PKD, 4, 8)
    a("s_nop 1")
    mm(a, Dr, F, PKD)
    mm(a, Di, F + 16, PKD)
    a("s_waitcnt vmcnt(16)")
    a("s_nop 10")
    for r in range(16):
        q = r % 2
        a(f"""
        v_lshlrev_b32 v{4+q}, 16, v{W+r}
        v_and_b32 v{6+q}, 0xffff0000, v{W+r}
        v_mul_f32 v{8+q}, v{Dr+r}, v{4+q}
        v_mul_f32 v{10+q}, v{Di+r}, v{4+q}
        v_fma_f32 v{8+q}, -v{Di+r}, v{6+q}, v{8+q}
        v_fmac_f32 v{10+q}, v{Dr+r}, v{6+q}
        v_cvt_pk_bf16_f32 v{PKD+r}, v{10+q}, v{8+q}
        """)
    a("s_nop 1")
    mm(a, Dr, PKD, F)
    mm(a, Di, PKD, F + 16)
    a("s_waitcnt vmcnt(0)")
    a("s_nop 10")
    twiddle_pack(a, Dr, Di, TWI, TWI + 16, PKD, 4, 8)
    a("s_nop 1")
    mm(a, Dr, PKD, M1T)
    mm(a, Di, PKD, M1T + 16)
    a("s_nop 7")
    for r in range(8):
        a(f"v_cvt_pk_bf16_f32 v{16+8+r}, v{Dr+2*r}, v{Dr+2*r+1}")
    a("s_nop 3")
    for r in range(8):
        a(f"v_cvt_pk_bf16_f32 v{16+r}, v{Di+2*r}, v{Di+2*r+1}")
    a(f"""
    buffer_store_dwordx4 v[16:19], v12, s[32:35], s67 offen
    buffer_store_dwordx4 v[20:23], v12, s[32:35], s68 offen
    buffer_store_dwordx4 v[24:27], v12, s[32:35], s67 offen offset:64
    buffer_store_dwordx4 v[28:31], v12, s[32:35], s68 offen offset:64
    """)
    a.label(L_end)
    a("s_endpgm")
    return descriptor(name, 256)
```

```python
from asmlib import *
from layout import *

STAGE = 45056
NBUF = 3
LDS_BYTES = STAGE * NBUF

def gen_gemm1(a, name, opt=None):
    opt = opt or {}
    no_mfma = opt.get("no_mfma", False)
    no_dsread = opt.get("no_dsread", False)
    no_epi = opt.get("no_epi", False)
    no_dma = opt.get("no_dma", False)
    stamp = opt.get("stamp", False)
    def st(i):
        if stamp:
            a(f"s_memtime s[{60+4*i}:{61+4*i}]")
            a(f"s_memrealtime s[{62+4*i}:{63+4*i}]")
    def st_out(n):
        if stamp:
            a("s_waitcnt lgkmcnt(0)")
            srd(a, 44, 24, 25, 1 << 20, STAMP_OFF)
            a("s_lshl_b32 s48, s2, 3")
            a("s_add_u32 s48, s48, s3")
            a("s_lshl_b32 s48, s48, 7")
            a("v_mov_b32 v10, 0")
            for i in range(n):
                for q in (0, 1):
                    a(f"v_mov_b32 v11, s{60+4*i+2*q}")
                    a(f"buffer_store_dword v11, v10, s[44:47], s48 offen offset:{i*8+q*4}")
            a("s_waitcnt vmcnt(0)")
    kernel_begin(a, name)
    L_end = name + "_end"; L_loader = name + "_loader"
    a(f"""
    s_cmp_ge_u32 s2, 256
    s_cbranch_scc1 {L_end}
    """)
    st(0)
    a(f"""
    s_load_dwordx4 s[20:23], s[0:1], 32     ; w1, b1
    s_load_dwordx2 s[24:25], s[0:1], 72     ; ws
    v_lshrrev_b32 v1, 6, v0
    v_and_b32 v2, 63, v0                    ; lane
    s_and_b32 s26, s2, 7                    ; xcd
    s_lshr_b32 s27, s2, 3                   ; j
    v_readfirstlane_b32 s3, v1
    s_and_b32 s28, s26, 1
    s_lshl_b32 s28, s28, 3
    s_and_b32 s29, s27, 7
    s_add_u32 s28, s28, s29                 ; tile_m
    s_lshr_b32 s29, s26, 1
    s_lshl_b32 s29, s29, 2
    s_lshr_b32 s30, s27, 3
    s_add_u32 s29, s29, s30                 ; tile_n
    s_waitcnt lgkmcnt(0)
    """)
    srd(a, 4, 24, 25, XN_BYTES, XN_OFF)
    srd(a, 8, 20, 21, 1024 * 3584 * 2)
    srd(a, 12, 24, 25, ACT_BYTES, ACT_OFF)
    srd(a, 16, 22, 23, 3584 * 2)
    a(f"""
    s_cmp_ge_u32 s3, 4
    s_cbranch_scc1 {L_loader}
    """)
    ACC = 0 + 16
    FX = 128
    FY = 172
    vA0, vA1, vB0, vB1, vB2 = 216, 217, 218, 219, 220
    cA0, cA1, cB0, cB1, cB2 = 221, 222, 223, 224, 225
    BIAS = 228
    a(f"""
    s_lshr_b32 s31, s3, 1                   ; wm
    s_and_b32 s32, s3, 1                    ; wn
    v_and_b32 v3, 15, v2                    ; i
    v_lshrrev_b32 v4, 4, v2                 ; g
    s_mul_i32 s33, s29, 448
    s_lshl_b32 s34, s32, 8
    s_add_u32 s34, s34, s33
    s_lshl_b32 s35, s32, 5
    s_add_u32 s35, s35, s33
    s_add_u32 s35, s35, 192                 ; (6+wn)*32
    v_lshlrev_b32 v5, 3, v4                 ; g*8 bytes
    """)
    for t in range(6):
        a(f"buffer_load_dwordx2 v[{BIAS+2*t}:{BIAS+2*t+1}], v5, s[16:19], s34 offen offset:{t*32}")
    a(f"buffer_load_dwordx2 v[{BIAS+12}:{BIAS+13}], v5, s[16:19], s35 offen")
    if opt.get("prefetch"):
        a(f"""
        s_lshr_b32 s50, s27, 3
        s_lshl_b32 s50, s50, 5
        s_lshl_b32 s51, s28, 7
        s_add_u32 s50, s50, s51              ; row0
        v_and_b32 v8, 31, v2
        v_add_u32 v8, s50, v8
        v_lshlrev_b32 v8, 11, v8
        v_lshrrev_b32 v9, 5, v2
        v_lshl_add_u32 v8, v9, 7, v8         ; A voff
        s_and_b32 s50, s27, 7
        s_lshl_b32 s50, s50, 3
        v_bfe_u32 v10, v2, 2, 3
        v_add_u32 v10, s50, v10
        v_lshl_add_u32 v10, v9, 6, v10
        v_mul_u32_u24 v10, 7168, v10
        v_and_b32 v11, 3, v2
        v_lshl_add_u32 v10, v11, 7, v10
        v_add_u32 v10, s33, v10              ; + tile_n*448
        s_lshl_b32 s50, s3, 8
        s_mul_i32 s51, s3, {2*64*7168}
        """)
        for q in range(2):
            a(f"buffer_load_dword v{12+2*q}, v8, s[4:7], s50 offen")
            a(f"buffer_load_dword v{13+2*q}, v10, s[8:11], s51 offen")
            a(f"s_add_u32 s50, s50, 1024")
            a(f"s_add_u32 s51, s51, {8*64*7168}")
    a(f"""
    v_lshrrev_b32 v6, 1, v3                 ; f = i>>1
    v_xor_b32 v6, v6, v4                    ; x0
    s_lshl_b32 s36, s31, 13                 ; wm*64*128
    v_lshlrev_b32 v7, 7, v3                 ; i*128
    v_add_u32 v7, s36, v7
    v_lshl_add_u32 v{vA0}, v6, 4, v7
    v_xor_b32 v6, 4, v6
    v_lshl_add_u32 v{vA1}, v6, 4, v7
    ; B bases
    v_lshrrev_b32 v6, 2, v3                 ; r
    v_lshl_add_u32 v6, v4, 3, v6            ; 8g+r
    v_mul_u32_u24 v6, 448, v6
    v_and_b32 v7, 3, v2
    v_lshl_add_u32 v6, v7, 3, v6            ; + c*8
    v_add_u32 v6, 16384, v6
    v_and_b32 v7, 1, v4
    v_lshlrev_b32 v7, 5, v7                 ; (g&1)*32
    s_lshl_b32 s36, s32, 8                  ; wn*256
    v_add_u32 v8, s36, v6
    v_add_u32 v{vB0}, v8, v7                ; even T
    v_sub_u32 v{vB1}, v8, v7                ; odd T
    s_add_u32 s36, s32, 6
    v_and_b32 v7, 1, v4
    v_xor_b32 v7, s36, v7
    v_lshl_add_u32 v{vB2}, v7, 5, v6
    s_mov_b32 s37, 0
    s_mov_b32 s38, 0                        ; k counter
    s_waitcnt vmcnt({4 if opt.get("prefetch") else 0})
    """)
    for t in range(7):
        a(f"v_lshlrev_b32 v{ACC+t*4+0}, 16, v{BIAS+2*t}")
        a(f"v_and_b32 v{ACC+t*4+1}, 0xffff0000, v{BIAS+2*t}")
        a(f"v_lshlrev_b32 v{ACC+t*4+2}, 16, v{BIAS+2*t+1}")
        a(f"v_and_b32 v{ACC+t*4+3}, 0xffff0000, v{BIAS+2*t+1}")
    for mt in range(1, 4):
        for r in range(28):
            a(f"v_mov_b32 v{ACC+mt*28+r}, v{ACC+r}")

    def reads(S, kk):
        out = []
        ca = cA0 if kk == 0 else cA1
        def rb(t):
            base = cB2 if t == 6 else (cB0 if t % 2 == 0 else cB1)
            toff = 0 if t == 6 else t * 32
            return [f"ds_read_b64_tr_b16 v[{S+16+t*4+2*h}:{S+16+t*4+2*h+1}], v{base} offset:{(32*kk+4*h)*448+toff}" for h in range(2)]
        def ra(mt):
            return [f"ds_read_b128 v[{S+mt*4}:{S+mt*4+3}], v{ca} offset:{mt*2048}"]
        out += ra(0) + rb(0) + rb(1) + ra(1) + rb(2) + rb(3) + ra(2) + rb(4) + rb(5) + ra(3) + rb(6)
        return [] if no_dsread else out
    def mfmas(S):
        out = []
        for mt in range(4):
            for t in range(7):
                c = ACC + (mt * 7 + t) * 4
                out.append(f"v_mfma_f32_16x16x32_bf16 v[{c}:{c+3}], v[{S+16+t*4}:{S+16+t*4+3}], v[{S+mt*4}:{S+mt*4+3}], v[{c}:{c+3}]")
        return [] if no_mfma else out
    def setcur():
        return [f"v_add_u32 v{c}, s37, v{b}" for c, b in ((cA0, vA0), (cA1, vA1), (cB0, vB0), (cB1, vB1), (cB2, vB2))]
    for s in setcur(): a(s)
    a("s_barrier")
    st(1)
    for s in reads(FX, 0): a(s)
    L_loop = name + "_cloop"
    a.label(L_loop)
    a("s_waitcnt lgkmcnt(0)")
    for s in interleave(mfmas(FX), reads(FY, 1)): a(s)
    a(f"""
    s_add_u32 s37, s37, {STAGE}
    s_cmp_eq_u32 s37, {STAGE*NBUF}
    s_cselect_b32 s37, 0, s37
    """)
    for s in setcur(): a(s)
    a("""
    s_waitcnt lgkmcnt(0)
    s_barrier
    """)
    for s in interleave(mfmas(FY), reads(FX, 0)): a(s)
    a(f"""
    s_add_u32 s38, s38, 1
    s_cmp_lt_u32 s38, 16
    s_cbranch_scc1 {L_loop}
    s_waitcnt lgkmcnt(0)
    """)
    st(2)
    a(f"""
    s_lshl_b32 s40, s28, 3                  ; tile_m*8
    s_lshl_b32 s41, s31, 2
    s_add_u32 s40, s40, s41
    s_mul_i32 s40, s40, 112
    s_mul_i32 s41, s29, 7
    s_add_u32 s40, s40, s41                 ; + kb0
    s_add_u32 s42, s40, 3
    s_lshl_b32 s42, s42, 10
    s_lshl_b32 s41, s32, 3
    s_add_u32 s42, s42, s41
    s_lshl_b32 s41, s32, 2
    s_add_u32 s40, s40, s41
    s_lshl_b32 s40, s40, 10
    v_lshlrev_b32 v5, 4, v2                 ; lane*16
    s_mov_b32 s43, 0x3fb8aa3b               ; log2(e)
    s_nop 7
    """)
    T0 = 128
    def mish_group(regs, tmp):
        n = len(regs)
        o = []
        for i, r in enumerate(regs): o.append(f"v_mul_f32 v{tmp+i}, s43, v{r}")
        for i, r in enumerate(regs): o.append(f"v_exp_f32 v{tmp+i}, v{tmp+i}")
        for i, r in enumerate(regs): o.append(f"v_add_f32 v{tmp+i}, 1.0, v{tmp+i}")
        for i, r in enumerate(regs): o.append(f"v_fma_f32 v{tmp+i}, v{tmp+i}, v{tmp+i}, 1.0")
        for i, r in enumerate(regs): o.append(f"v_rcp_f32 v{tmp+i}, v{tmp+i}")
        for i, r in enumerate(regs): o.append(f"v_fma_f32 v{tmp+i}, -2.0, v{tmp+i}, 1.0")
        for i, r in enumerate(regs): o.append(f"v_mul_f32 v{r}, v{r}, v{tmp+i}")
        return o
    PK = 160
    pk = 0
    for mt in range(4):
        for p in range(4):
            if p < 3:
                c = ACC + (mt * 7 + 2 * p) * 4
                regs = list(range(c, c + 8))
            else:
                c = ACC + (mt * 7 + 6) * 4
                regs = list(range(c, c + 4))
            if not no_epi:
                for s in mish_group(regs, T0): a(s)
            d = PK + (pk % 8) * 4; pk += 1
            for i in range(len(regs) // 2):
                a(f"v_cvt_pk_bf16_f32 v{d+i}, v{regs[2*i]}, v{regs[2*i+1]}")
            if p < 3:
                a(f"buffer_store_dwordx4 v[{d}:{d+3}], v5, s[12:15], s40 offen offset:{p*1024}")
            else:
                a(f"buffer_store_dwordx2 v[{d}:{d+1}], v5, s[12:15], s42 offen")
        if mt < 3:
            a(f"s_add_u32 s40, s40, {112*1024}")
            a(f"s_add_u32 s42, s42, {112*1024}")
    st(3)
    if stamp: a("s_waitcnt vmcnt(0)")
    st(4)
    st_out(5)
    a("s_endpgm")
    a.label(L_loader)
    VA = 16
    VB = 20
    a(f"""
    s_sub_u32 s31, s3, 4                    ; lw
    s_lshl_b32 s32, s31, 8                  ; lw*4*64
    v_add_u32 v3, s32, v2
    s_lshl_b32 s33, s28, 18                 ; tile_m*128*2048
    """)
    for ii in range(4):
        a(f"""
        v_add_u32 v4, {ii*64}, v3
        v_lshrrev_b32 v5, 3, v4             ; row
        v_and_b32 v6, 7, v4                 ; pc
        v_lshrrev_b32 v7, 1, v5
        v_and_b32 v7, 7, v7
        v_xor_b32 v6, v6, v7
        v_lshlrev_b32 v5, 11, v5
        v_lshl_add_u32 v5, v6, 4, v5
        v_add_u32 v{VA+ii}, s33, v5
        """)
    a(f"""
    s_mul_i32 s32, s31, 448
    v_add_u32 v3, s32, v2
    s_mul_i32 s33, s29, 448
    s_movk_i32 s34, 2341
    """)
    for ii in range(7):
        a(f"""
        v_add_u32 v4, {ii*64}, v3
        v_mul_u32_u24 v5, s34, v4
        v_lshrrev_b32 v5, 16, v5            ; k
        v_mul_u32_u24 v6, 28, v5
        v_sub_u32 v6, v4, v6                ; pc
        v_lshrrev_b32 v7, 2, v5
        v_and_b32 v7, 2, v7
        v_xor_b32 v6, v6, v7
        v_mul_u32_u24 v5, 7168, v5
        v_lshl_add_u32 v5, v6, 4, v5
        v_add_u32 v{VB+ii}, s33, v5
        """)
    a(f"""
    s_lshl_b32 s35, s31, 12
    s_mul_i32 s36, s31, 7168
    s_add_u32 s36, s36, 16384
    s_mov_b32 s37, 0
    s_mov_b32 s38, 0                        ; A soffset
    s_mov_b32 s39, 0                        ; B soffset
    """)
    def issue():
        if not no_dma:
            a("s_add_u32 m0, s37, s35")
            for ii in range(4):
                a("s_nop 0")
                a(f"buffer_load_dwordx4 v{VA+ii}, s[4:7], s38 offen lds")
                if ii < 3: a("s_add_u32 m0, m0, 1024")
            a("s_add_u32 m0, s37, s36")
            for ii in range(7):
                a("s_nop 0")
                a(f"buffer_load_dwordx4 v{VB+ii}, s[8:11], s39 offen lds")
                if ii < 6: a("s_add_u32 m0, m0, 1024")
        a(f"""
        s_add_u32 s38, s38, {0 if opt.get("samek") else 128}
        s_add_u32 s39, s39, {0 if opt.get("samek") else 64*7168}
        s_add_u32 s37, s37, {STAGE}
        s_cmp_eq_u32 s37, {STAGE*NBUF}
        s_cselect_b32 s37, 0, s37
        """)
    issue(); issue(); issue()
    a("""
    s_waitcnt vmcnt(22)
    s_barrier
    s_mov_b32 s40, 1
    """)
    L_ll = name + "_lloop"
    a.label(L_ll)
    a("""
    s_waitcnt vmcnt(11)
    s_barrier
    """)
    issue()
    a(f"""
    s_add_u32 s40, s40, 1
    s_cmp_lt_u32 s40, 14
    s_cbranch_scc1 {L_ll}
    s_waitcnt vmcnt(11)
    s_barrier
    s_waitcnt vmcnt(0)
    s_barrier
    """)
    a.label(L_end)
    a("s_endpgm")
    return descriptor(name, 256)
```

```python
from asmlib import *
from layout import *
import tables as T

LDS_BYTES = 16384 + 16384

def table_srd(a, d, tmp):
    a(f"s_getpc_b64 s[{tmp}:{tmp+1}]")
    a(f"s_add_u32 s{tmp}, s{tmp}, fft_tab@rel32@lo+4")
    a(f"s_addc_u32 s{tmp+1}, s{tmp+1}, fft_tab@rel32@hi+12")
    srd(a, d, tmp, tmp + 1, T.TABLE_BYTES)

def load_set(a, dst, voff, srdreg, soff, base):
    for qd in range(8):
        a(f"buffer_load_dwordx4 v[{dst+4*qd}:{dst+4*qd+3}], v{voff}, s[{srdreg}:{srdreg+3}], {soff[qd//4]} offen offset:{(qd%4)*1024}")

def twiddle_pack(a, re, im, tc, ts, out, t0, t1):
    for r in range(16):
        a(f"v_mul_f32 v{t0+(r%4)}, v{re+r}, v{tc+r}")
        a(f"v_mul_f32 v{t1+(r%4)}, v{im+r}, v{tc+r}")
        a(f"v_fmac_f32 v{t0+(r%4)}, v{im+r}, v{ts+r}")
        a(f"v_fma_f32 v{t1+(r%4)}, -v{re+r}, v{ts+r}, v{t1+(r%4)}")
        a(f"v_cvt_pk_bf16_f32 v{out+r}, v{t0+(r%4)}, v{t1+(r%4)}")

def mm(a, D, A, B, first=True):
    for j in range(4):
        c = "0" if (j == 0 and first) else f"v[{D}:{D+15}]"
        a(f"v_mfma_f32_32x32x16_bf16 v[{D}:{D+15}], v[{A+4*j}:{A+4*j+3}], v[{B+4*j}:{B+4*j+3}], {c}")

def gen_k0(a, name, opt=None):
    opt = opt or {}
    kernel_begin(a, name)
    L_end = name + "_end"
    a(f"""
    s_cmp_ge_u32 s2, 256
    s_cbranch_scc1 {L_end}
    s_load_dwordx4 s[40:43], s[0:1], 0      ; x, w_r
    s_load_dwordx2 s[44:45], s[0:1], 16     ; w_i
    s_load_dwordx2 s[46:47], s[0:1], 72     ; ws
    v_lshrrev_b32 v2, 6, v0
    v_and_b32 v1, 63, v0                    ; lane
    s_and_b32 s48, s2, 7                    ; q
    s_lshr_b32 s49, s2, 3                   ; n2 / m1
    v_readfirstlane_b32 s3, v2              ; wave i
    v_lshlrev_b32 v3, 4, v1                 ; lane*16
    """)
    table_srd(a, 4, 50)
    for nm, dst, s0 in (("K0B1", 64, 52), ("K0TW", 96, 54), ("F", 128, 56), ("K0SP", 160, 58)):
        a(f"s_mov_b32 s{s0}, {T.SETS[nm]}")
        a(f"s_mov_b32 s{s0+1}, {T.SETS[nm]+4096}")
    a(f"""
    s_lshl_b32 s60, s48, 2
    s_add_u32 s60, s60, s3                  ; n1
    s_lshl_b32 s60, s60, 5
    s_add_u32 s60, s60, s49                 ; n
    s_lshl_b32 s60, s60, 11
    s_add_u32 s61, s60, {1024*2048}
    s_waitcnt lgkmcnt(0)
    """)
    srd(a, 8, 40, 41, XN_BYTES)
    a(f"""
    buffer_load_dwordx4 v[16:19], v3, s[8:11], s60 offen
    buffer_load_dwordx4 v[20:23], v3, s[8:11], s60 offen offset:1024
    buffer_load_dwordx4 v[24:27], v3, s[8:11], s61 offen
    buffer_load_dwordx4 v[28:31], v3, s[8:11], s61 offen offset:1024
    """)
    load_set(a, 64, 3, 4, ("s52", "s53"), 0)
    load_set(a, 96, 3, 4, ("s54", "s55"), 0)
    load_set(a, 128, 3, 4, ("s56", "s57"), 0)
    load_set(a, 160, 3, 4, ("s58", "s59"), 0)
    srd(a, 12, 42, 43, 2048 * 513 * 2)
    srd(a, 16, 44, 45, 2048 * 513 * 2)
    srd(a, 20, 46, 47, XN_BYTES, XN_OFF)
    srd(a, 24, 46, 47, 4 * MB, P_OFF)
    srd(a, 28, 46, 47, 4 * MB, WT_OFF)
    srd(a, 32, 46, 47, 1 * MB, G_OFF)
    srd(a, 36, 46, 47, 256 * 1024, FLAG_OFF)
    WV = 224
    for hf in range(2):
        fl, nf, s2c, jo, sg = (WV + 5 * hf + i for i in range(5))
        a(f"""
        v_add_u32 v4, {1+256*hf}, v0            ; sc
        v_lshlrev_b32 v{s2c}, 1, v4
        v_and_b32 v5, 31, v4                    ; sc%32
        v_lshrrev_b32 v6, 5, v4                 ; sc/32
        v_cmp_lt_u32 vcc, 16, v5                ; mirror
        v_sub_u32 v7, 32, v5
        v_sub_u32 v8, 31, v6
        v_cndmask_b32 v{fl}, 0, 1, vcc
        v_cndmask_b32 v{nf}, 1, 0, vcc
        v_cndmask_b32 v5, v5, v7, vcc           ; k1
        v_cndmask_b32 v6, v6, v8, vcc           ; k2
        v_lshlrev_b32 v{sg}, 31, v{fl}
        v_and_b32 v7, 15, v4
        v_lshrrev_b32 v8, 4, v4
        v_cmp_eq_u32 vcc, 0, v7                 ; special
        v_subrev_u32 v8, 1, v8                  ; sc/16-1
        s_nop 0
        v_cndmask_b32 v5, v5, 0, vcc
        v_cndmask_b32 v6, v6, v8, vcc
        v_lshl_add_u32 v5, v5, 5, v6            ; k1*32+k2
        v_lshlrev_b32 v{jo}, 12, v5
        """)
    a(f"""
    s_lshl_b32 s62, s49, 1
    s_lshl_b32 s63, s48, 8
    s_add_u32 s62, s62, s63                 ; m base = 2*m1 + 256 q
    """)
    for e in range(4):
        hf, ab = e >> 1, e & 1
        fl, nf, s2c, jo, sg = (WV + 5 * hf + i for i in range(5))
        for i in range(4):
            a(f"""
            s_add_u32 s63, s62, {ab + 64*i}
            s_sub_u32 s64, 2048, s63
            s_and_b32 s64, s64, 2047
            s_mul_i32 s63, s63, 1026
            s_mul_i32 s64, s64, 1026
            v_mad_u32_u24 v4, v{fl}, s64, v{s2c}
            v_mad_u32_u24 v4, v{nf}, s63, v4
            buffer_load_ushort v{192+4*e+i}, v4, s[12:15], 0 offen
            buffer_load_ushort v{208+4*e+i}, v4, s[16:19], 0 offen
            """)
    a(f"""
    v_mov_b32 v4, 0
    v_lshlrev_b32 v5, 2, v0
    s_lshl_b32 s63, s2, 10
    buffer_store_dword v4, v5, s[36:39], s63 offen
    s_lshl_b32 s63, s2, 2
    s_add_u32 s63, s63, s3
    s_lshr_b32 s64, s63, 7                  ; dgroup
    s_and_b32 s65, s63, 3                   ; dtl
    s_lshl_b32 s64, s64, 2
    s_add_u32 s64, s64, s65
    s_lshl_b32 s64, s64, 4                  ; d base
    s_bfe_u32 s65, s63, 0x50002             ; ks
    s_lshl_b32 s65, s65, 4
    v_and_b32 v4, 15, v1
    v_add_u32 v4, s64, v4                   ; d
    v_lshrrev_b32 v5, 4, v1
    v_lshl_add_u32 v5, v5, 2, s65
    s_lshl_b32 s63, s63, 10
    s_mov_b32 s66, 0x3a800000               ; 1/1024
    """)
    for jj in range(4):
        a(f"""
        v_add_u32 v6, {jj}, v5                  ; cidx
        v_and_b32 v7, 31, v6                    ; k2
        v_bfe_u32 v8, v6, 5, 3                  ; k1>>1
        v_lshrrev_b32 v9, 8, v6                 ; parity
        v_lshl_add_u32 v8, v8, 1, v9            ; k1
        v_lshl_add_u32 v9, v7, 5, v8            ; k1+32k2
        v_lshlrev_b32 v7, 4, v7
        v_add_u32 v7, 16, v7                    ; 16(k2+1)
        v_cmp_eq_u32 vcc, 0, v8
        s_nop 1
        v_cndmask_b32 v9, v9, v7, vcc           ; k
        v_mul_u32_u24 v7, v9, v4
        v_and_b32 v7, 1023, v7
        v_cvt_f32_u32 v7, v7
        v_mul_f32 v7, s66, v7
        v_cmp_eq_u32 vcc, 512, v9
        v_cos_f32 v8, v7
        v_sin_f32 v7, v7
        v_mul_f32 v9, 0.5, v8
        v_cndmask_b32 v8, v8, v9, vcc
        v_cvt_pk_bf16_f32 v{12+jj}, v8, -v7
        """)
    a("buffer_store_dwordx4 v[12:15], v3, s[32:35], s63 offen")
    a("s_waitcnt vmcnt(63)")
    X = 16; F32 = 32
    for rho in range(2):
        for w in range(8):
            a(f"v_lshlrev_b32 v{F32+16*rho+2*w}, 16, v{X+8*rho+w}")
            a(f"v_and_b32 v{F32+16*rho+2*w+1}, 0xffff0000, v{X+8*rho+w}")
    def reduce2(r0, r1, s0, s1):
        for sh in ("row_ror:8", "row_ror:4", "row_ror:2", "row_ror:1"):
            a("s_nop 0")
            a(f"v_add_f32_dpp v{r0}, v{r0}, v{r0} {sh} row_mask:0xf bank_mask:0xf")
            a(f"v_add_f32_dpp v{r1}, v{r1}, v{r1} {sh} row_mask:0xf bank_mask:0xf")
        for sh, m in (("row_bcast:15", "0xa"), ("row_bcast:31", "0xc")):
            a("s_nop 0")
            a(f"v_add_f32_dpp v{r0}, v{r0}, v{r0} {sh} row_mask:{m} bank_mask:0xf")
            a(f"v_add_f32_dpp v{r1}, v{r1}, v{r1} {sh} row_mask:{m} bank_mask:0xf")
        a("s_nop 0")
        a(f"v_readlane_b32 s{s0}, v{r0}, 63")
        a(f"v_readlane_b32 s{s1}, v{r1}, 63")
        a("s_nop 1")
    for rho in range(2):
        a(f"v_add_f32 v{4+rho}, v{F32+16*rho}, v{F32+16*rho+1}")
        for w in range(2, 16):
            a(f"v_add_f32 v{4+rho}, v{4+rho}, v{F32+16*rho+w}")
    a("s_nop 0")
    reduce2(4, 5, 64, 65)
    a(f"""
    v_mov_b32 v6, s66
    v_mul_f32 v4, s64, v6                   ; mean0
    v_mul_f32 v5, s65, v6                   ; mean1
    """)
    for rho in range(2):
        a(f"v_sub_f32 v8, v{F32+16*rho}, v{4+rho}")
        a(f"v_mul_f32 v{10+rho}, v8, v8")
        for w in range(1, 16):
            a(f"v_sub_f32 v8, v{F32+16*rho+w}, v{4+rho}")
            a(f"v_fmac_f32 v{10+rho}, v8, v8")
    a("s_nop 0")
    reduce2(10, 11, 64, 65)
    a(f"""
    v_mul_f32 v10, s64, v6                  ; var0
    v_mul_f32 v11, s65, v6
    v_cvt_pk_bf16_f32 v4, v4, v5
    v_cvt_pk_bf16_f32 v10, v10, v11
    v_and_b32 v5, 0xffff0000, v4
    v_lshlrev_b32 v4, 16, v4
    v_and_b32 v11, 0xffff0000, v10
    v_lshlrev_b32 v10, 16, v10
    v_add_f32 v10, 0x3727c5ac, v10          ; +1e-5
    v_add_f32 v11, 0x3727c5ac, v11
    v_cvt_pk_bf16_f32 v10, v10, v11
    v_and_b32 v11, 0xffff0000, v10
    v_lshlrev_b32 v10, 16, v10
    v_sqrt_f32 v10, v10
    v_sqrt_f32 v11, v11
    s_nop 0
    v_cvt_pk_bf16_f32 v10, v10, v11
    v_and_b32 v11, 0xffff0000, v10
    v_lshlrev_b32 v10, 16, v10
    v_rcp_f32 v10, v10
    v_rcp_f32 v11, v11
    """)
    for rho in range(2):
        for w in range(8):
            f0 = F32 + 16 * rho + 2 * w
            a(f"""
            v_sub_f32 v{f0}, v{f0}, v{4+rho}
            v_sub_f32 v{f0+1}, v{f0+1}, v{4+rho}
            v_cvt_pk_bf16_f32 v8, v{f0}, v{f0+1}
            v_lshlrev_b32 v{f0}, 16, v8
            v_and_b32 v{f0+1}, 0xffff0000, v8
            v_mul_f32 v{f0}, v{f0}, v{10+rho}
            v_mul_f32 v{f0+1}, v{f0+1}, v{10+rho}
            v_cvt_pk_bf16_f32 v{X+8*rho+w}, v{f0}, v{f0+1}
            """)
    a(f"""
    s_lshl_b32 s64, s3, 12
    v_add_u32 v4, s64, v3
    buffer_store_dwordx4 v[16:19], v3, s[20:23], s60 offen
    buffer_store_dwordx4 v[20:23], v3, s[20:23], s60 offen offset:1024
    buffer_store_dwordx4 v[24:27], v3, s[20:23], s61 offen
    buffer_store_dwordx4 v[28:31], v3, s[20:23], s61 offen offset:1024
    ds_write_b128 v4, v[16:19]
    ds_write_b128 v4, v[20:23] offset:1024
    ds_write_b128 v4, v[24:27] offset:2048
    ds_write_b128 v4, v[28:31] offset:3072
    ; tr read address: (8h + r)*64 + (16(G%2)+4c)*2
    v_lshrrev_b32 v5, 5, v1                 ; h
    v_bfe_u32 v6, v1, 2, 2                  ; r
    v_lshl_add_u32 v5, v5, 3, v6
    v_lshlrev_b32 v5, 6, v5
    v_bfe_u32 v6, v1, 4, 1
    v_lshl_add_u32 v5, v6, 5, v5
    v_and_b32 v6, 3, v1
    v_lshl_add_u32 v5, v6, 3, v5
    v_add_u32 v5, s64, v5
    s_waitcnt lgkmcnt(0)
    """)
    A1 = 240
    for t in range(4):
        for e in range(2):
            a(f"ds_read_b64_tr_b16 v[{A1+4*t+2*e}:{A1+4*t+2*e+1}], v5 offset:{(t//2)*2048 + (16*(t%2)+4*e)*64}")
    a("s_waitcnt vmcnt(38) lgkmcnt(0)")
    D1r, D1i = 32, 48
    mm(a, D1r, A1, 64)
    mm(a, D1i, A1, 80)
    a("s_waitcnt vmcnt(6)")
    for e in range(4):
        hf, ab = e >> 1, e & 1
        fl, nf, s2c, jo, sg = (WV + 5 * hf + i for i in range(5))
        for i in range(4):
            a(f"v_lshl_or_b32 v{192+4*e+i}, v{208+4*e+i}, 16, v{192+4*e+i}")
            a(f"v_xor_b32 v{192+4*e+i}, v{sg}, v{192+4*e+i}")
    a(f"""
    s_lshl_b32 s64, s48, 9
    s_lshl_b32 s65, s49, 4
    s_add_u32 s64, s64, s65                 ; q*512 + idx*16
    s_add_u32 s65, s64, {512*4096}
    """)
    for e in range(4):
        hf, ab = e >> 1, e & 1
        jo = WV + 5 * hf + 3
        a(f"buffer_store_dwordx4 v[{192+4*e}:{192+4*e+3}], v{jo}, s[28:31], s{64+ab} offen")
    PKD = 16
    PKD = 208
    twiddle_pack(a, D1r, D1i, 96, 112, PKD, 4, 8)
    a("s_nop 1")
    D2r, D2i, Sr, Si = 64, 80, 96, 112
    mm(a, Sr, PKD, 160)
    mm(a, Si, PKD, 176)
    mm(a, D2r, PKD, 128)
    mm(a, D2i, PKD, 144)
    a(f"""
    v_lshrrev_b32 v5, 5, v1
    v_lshlrev_b32 v5, 11, v5                ; 4h*512
    v_and_b32 v6, 31, v1
    v_lshl_add_u32 v5, v6, 4, v5
    s_lshl_b32 s66, s3, 2
    s_add_u32 s66, s66, 16384
    v_add_u32 v5, s66, v5
    v_lshlrev_b32 v6, 4, v0
    v_add_u32 v6, 16384, v6
    v_lshlrev_b32 v7, 12, v0                ; tid*4096
    s_nop 7
    s_mov_b32 exec_hi, 0
    v_mov_b32 v{D2r}, v{Sr}
    v_mov_b32 v{D2r+8}, v{Sr+8}
    v_mov_b32 v{D2i}, v{Si}
    v_mov_b32 v{D2i+8}, v{Si+8}
    s_mov_b32 exec_hi, -1
    """)
    for r in range(16):
        a(f"v_cvt_pk_bf16_f32 v{32+r}, v{D2r+r}, v{D2i+r}")
        a(f"ds_write_b32 v5, v{32+r} offset:{(8*(r//4)+r%4)*512}")
    a("""
    s_waitcnt lgkmcnt(0)
    s_barrier
    """)
    for e in range(4):
        a(f"ds_read_b128 v[{48+4*e}:{48+4*e+3}], v6 offset:{e*4096}")
    for e in range(4):
        a(f"s_waitcnt lgkmcnt({3-e})")
        a(f"buffer_store_dwordx4 v[{48+4*e}:{48+4*e+3}], v7, s[24:27], s64 offen")
        if e < 3: a(f"s_add_u32 s64, s64, {256*4096}")
    a.label(L_end)
    a("s_endpgm")
    return descriptor(name, 256)
```

```python
MB = 1 << 20
XN_OFF = 0
ACT_OFF = 4 * MB
P_OFF = 20 * MB
WT_OFF = 24 * MB
Z_OFF = 28 * MB
G_OFF = 32 * MB
EX_OFF = 36 * MB
XN_BYTES = 2048 * 1024 * 2
ACT_BYTES = 2048 * 3584 * 2
STAMP_OFF = 200 * MB
FLAG_OFF = 34 * MB
ST_OFF = 35 * MB
CS_OFF = 35 * MB + 65536
WS_SRD_BYTES = 64 * MB
```

```python
import numpy as np

def bf16_bits(x):
    x = np.asarray(x, dtype=np.float32)
    u = x.view(np.uint32).astype(np.uint64)
    r = (u + 0x7FFF + ((u >> 16) & 1)) >> 16
    return r.astype(np.uint32)
def pk(lo, hi):
    return (bf16_bits(lo) | (bf16_bits(hi) << 16)).astype(np.uint32)
def f32_bits(x):
    return np.asarray(x, dtype=np.float32).view(np.uint32)

L = np.arange(64); LI = L % 32; H = L // 32

def cs(num, den):
    num = np.mod(num, den)
    ang = 2 * np.pi * num / den
    c = np.cos(ang); s = np.sin(ang)
    c[np.abs(c) < 1e-12] = 0; s[np.abs(s) < 1e-12] = 0
    return c, s

def cset(numfn, den):
    out = np.zeros((2, 4, 64, 4), dtype=np.uint32)
    for j in range(4):
        for i in range(4):
            kk = 8 * j + 4 * H + i
            c, s = cs(numfn(LI, kk), den)
            out[0, j, :, i] = pk(c, s)
            out[1, j, :, i] = pk(-s, c)
    return out.reshape(8, 64, 4)

def twset(numfn, den, scale=1.0):
    out = np.zeros((2, 4, 64, 4), dtype=np.uint32)
    for j in range(4):
        for i in range(4):
            row = 8 * j + 4 * H + i
            c, s = cs(numfn(LI, row), den)
            out[0, j, :, i] = f32_bits(c * scale)
            out[1, j, :, i] = f32_bits(s * scale)
    return out.reshape(8, 64, 4)

def k0_b1():
    out = np.zeros((2, 4, 64, 4), dtype=np.uint32)
    ab = LI // 16; k1 = LI % 16
    for t in range(4):
        rho = t // 2
        sig = np.where((ab == 1) & (rho == 1), -1.0, 1.0)
        vals = np.zeros((2, 8, 64))
        for jj in range(8):
            d1 = 16 * (t % 2) + 8 * H + jj
            c, s = cs(d1 * k1, 32)
            vals[0, jj] = sig * c
            vals[1, jj] = np.where(k1 == 0, sig * (1 - 2 * (d1 % 2)), -sig * s)
        for tile in range(2):
            for i in range(4):
                out[tile, t, :, i] = pk(vals[tile, 2 * i], vals[tile, 2 * i + 1])
    return out.reshape(8, 64, 4)

def k0_sp():
    out = np.zeros((2, 4, 64, 4), dtype=np.uint32)
    J = LI + 1
    ev = (J % 2 == 0).astype(float); od = 1 - ev
    for j in range(4):
        for i in range(4):
            d2 = 8 * j + 4 * H + i
            c, s = cs(d2 * J, 64)
            out[0, j, :, i] = pk(ev * c, od * c)
            out[1, j, :, i] = pk(-ev * s, -od * s)
    return out.reshape(8, 64, 4)

SETS = {}
order = []
def add(name, arr):
    SETS[name] = len(order) * 8192
    order.append(arr)
add("F", cset(lambda ln, kk: ln * kk, 32))
add("M1_1", cset(lambda ln, kk: kk * (2 * ln + 1), 64))
add("F_b", cset(lambda ln, kk: ln * kk, 32))
add("M1T_1", cset(lambda ln, kk: ln * (2 * kk + 1), 64))
add("TWF_0", twset(lambda ln, row: row * (2 * ln), 2048))
add("TWF_1", twset(lambda ln, row: row * (2 * ln + 1), 2048))
add("TWI_0", twset(lambda ln, row: ln * (2 * row), 2048, 2.0 ** -20))
add("TWI_1", twset(lambda ln, row: ln * (2 * row + 1), 2048, 2.0 ** -20))
add("K0B1", k0_b1())
add("K0TW", twset(lambda ln, row: row * (ln % 16), 1024))
add("K0SP", k0_sp())
TABLE = np.concatenate([o.reshape(-1) for o in order])
TABLE_BYTES = TABLE.size * 4

def emit(a, sym):
    a.raw(".p2align 8")
    a.raw(f".type {sym},@object")
    a.raw(f"{sym}:")
    for i in range(0, TABLE.size, 8):
        a.raw(".long " + ",".join(("0x%x" % v) if v > 9 else str(v) for v in TABLE[i:i + 8]))
    a.raw(f".size {sym}, {TABLE_BYTES}")

def col_k(k1, k2):
    return np.where(k1 == 0, 16 * (k2 + 1), k1 + 32 * k2)
```

```python
import sys, json
from asmlib import *
import tables, k0, gemm1, colfft
opt = json.loads(sys.argv[2]) if len(sys.argv) > 2 else {}
ks = opt.get("kernels", ["k0", "gemm1", "colfft", "gemm2"])
a = Asm()
hdr = open("parallel_sum__spectral_gfnet__dense_activation_mish__prompt.s.ref").read().split("\n")
for ln in hdr[:11]: a.raw(ln)
if "gemm2" in ks: import gemm2
spec = {"k0": (256, k0.LDS_BYTES, k0.gen_k0), "gemm1": (512, gemm1.LDS_BYTES, gemm1.gen_gemm1), "colfft": (256, 0, colfft.gen_colfft)}
if "gemm2" in ks: spec["gemm2"] = (512, gemm2.LDS_BYTES, gemm2.gen_gemm2)
for k in ks:
    a.raw(f"; @launch kernel={k}_kernel grid=(256,1,1) block=({spec[k][0]},1,1) lds={spec[k][1]}")
a.raw('.amdgcn_target "amdgcn-amd-amdhsa--gfx950"')
a.raw(".text")
ds = [spec[k][2](a, k + "_kernel", opt.get(k, {})) for k in ks]
a.raw('.section .rodata,"a"')
for d in ds: a.raw(d)
tables.emit(a, "fft_tab")
open(sys.argv[1], "w").write(a.text())
```

```python
class Asm:
    def __init__(self):
        self.lines = []
        self.uid = 0
    def __call__(self, s):
        for ln in s.strip("\n").split("\n"):
            ln = ln.strip()
            if ln:
                self.lines.append("    " + ln)
    def label(self, l):
        self.lines.append(l + ":")
    def raw(self, s):
        self.lines.append(s)
    def newlabel(self, p="L"):
        self.uid += 1
        return f"{p}_{self.uid}"
    def text(self):
        return "\n".join(self.lines) + "\n"

def vr(b, n):
    return f"v{b}" if n == 1 else f"v[{b}:{b+n-1}]"
def sr(b, n):
    return f"s{b}" if n == 1 else f"s[{b}:{b+n-1}]"

def srd(a, d, lo, hi, nbytes, off=0):
    if off:
        a(f"s_add_u32 s{d}, s{lo}, {off}")
        a(f"s_addc_u32 s{d+1}, s{hi}, 0")
    else:
        a(f"s_mov_b32 s{d}, s{lo}")
        a(f"s_mov_b32 s{d+1}, s{hi}")
    a(f"s_mov_b32 s{d+2}, {nbytes}")
    a(f"s_mov_b32 s{d+3}, 0x00020000")

def kernel_begin(a, name):
    a.raw(f".globl {name}")
    a.raw(".p2align 8")
    a.raw(f".type {name},@function")
    a.label(name)

def descriptor(name, vgpr, sgpr=102, accum=None):
    if accum is None:
        accum = min(256, (vgpr + 3) // 4 * 4)
    return f""".p2align 6
.amdhsa_kernel {name}
  .amdhsa_next_free_vgpr {vgpr}
  .amdhsa_next_free_sgpr {sgpr}
  .amdhsa_accum_offset {accum}
  .amdhsa_group_segment_fixed_size 0
  .amdhsa_kernarg_size 80
  .amdhsa_user_sgpr_count 2
  .amdhsa_user_sgpr_kernarg_segment_ptr 1
  .amdhsa_system_sgpr_workgroup_id_x 1
.end_amdhsa_kernel
"""

def interleave(main, fill, start=0, per=1):
    out = []
    fi = 0
    for i, m in enumerate(main):
        out.append(m)
        if i >= start:
            for _ in range(per):
                if fi < len(fill):
                    out.append(fill[fi]); fi += 1
    out.extend(fill[fi:])
    return out

class Stamper:
    def __init__(self, a, on, base, wslo, wshi, srdreg, tmp, off, vt=(10, 11)):
        self.a, self.on, self.base, self.wslo, self.wshi, self.srdreg, self.tmp, self.off, self.vt = a, on, base, wslo, wshi, srdreg, tmp, off, vt
    def st(self, i):
        if self.on:
            self.a(f"s_memtime s[{self.base+4*i}:{self.base+1+4*i}]")
            self.a(f"s_memrealtime s[{self.base+2+4*i}:{self.base+3+4*i}]")
    def out(self, n):
        if self.on:
            a = self.a; t = self.tmp; v0, v1 = self.vt
            a("s_waitcnt lgkmcnt(0)")
            srd(a, self.srdreg, self.wslo, self.wshi, 1 << 20, self.off)
            a(f"s_lshl_b32 s{t}, s2, 3")
            a(f"s_add_u32 s{t}, s{t}, s3")
            a(f"s_lshl_b32 s{t}, s{t}, 7")
            a(f"v_mov_b32 v{v0}, 0")
            for i in range(n):
                for q in (0, 1):
                    a(f"v_mov_b32 v{v1}, s{self.base+4*i+2*q}")
                    a(f"buffer_store_dword v{v1}, v{v0}, s[{self.srdreg}:{self.srdreg+3}], s{t} offen offset:{i*8+q*4}")
            a("s_waitcnt vmcnt(0)")
```

```python
from asmlib import *
from layout import *

STAGE = 45056
NBUF = 3
LDS_BYTES = STAGE * NBUF

def gen_gemm1(a, name, opt=None):
    opt = opt or {}
    no_mfma = opt.get("no_mfma", False)
    no_dsread = opt.get("no_dsread", False)
    no_epi = opt.get("no_epi", False)
    no_dma = opt.get("no_dma", False)
    stamp = opt.get("stamp", False)
    def st(i):
        if stamp:
            a(f"s_memtime s[{60+4*i}:{61+4*i}]")
            a(f"s_memrealtime s[{62+4*i}:{63+4*i}]")
    def st_out(n):
        if stamp:
            a("s_waitcnt lgkmcnt(0)")
            srd(a, 44, 24, 25, 1 << 20, STAMP_OFF)
            a("s_lshl_b32 s48, s2, 3")
            a("s_add_u32 s48, s48, s3")
            a("s_lshl_b32 s48, s48, 7")
            a("v_mov_b32 v10, 0")
            for i in range(n):
                for q in (0, 1):
                    a(f"v_mov_b32 v11, s{60+4*i+2*q}")
                    a(f"buffer_store_dword v11, v10, s[44:47], s48 offen offset:{i*8+q*4}")
            a("s_waitcnt vmcnt(0)")
    kernel_begin(a, name)
    L_end = name + "_end"; L_loader = name + "_loader"
    a(f"""
    s_cmp_ge_u32 s2, 256
    s_cbranch_scc1 {L_end}
    """)
    st(0)
    a(f"""
    s_load_dwordx4 s[20:23], s[0:1], 32     ; w1, b1
    s_load_dwordx2 s[24:25], s[0:1], 72     ; ws
    v_lshrrev_b32 v1, 6, v0
    v_and_b32 v2, 63, v0                    ; lane
    s_and_b32 s26, s2, 7                    ; xcd
    s_lshr_b32 s27, s2, 3                   ; j
    v_readfirstlane_b32 s3, v1
    s_and_b32 s28, s26, 1
    s_lshl_b32 s28, s28, 3
    s_and_b32 s29, s27, 7
    s_add_u32 s28, s28, s29                 ; tile_m
    s_lshr_b32 s29, s26, 1
    s_lshl_b32 s29, s29, 2
    s_lshr_b32 s30, s27, 3
    s_add_u32 s29, s29, s30                 ; tile_n
    s_waitcnt lgkmcnt(0)
    """)
    srd(a, 4, 24, 25, XN_BYTES, XN_OFF)
    srd(a, 8, 20, 21, 1024 * 3584 * 2)
    srd(a, 12, 24, 25, ACT_BYTES, ACT_OFF)
    srd(a, 16, 22, 23, 3584 * 2)
    a(f"""
    s_cmp_ge_u32 s3, 4
    s_cbranch_scc1 {L_loader}
    """)
    ACC = 0 + 16
    FX = 128
    FY = 172
    vA0, vA1, vB0, vB1, vB2 = 216, 217, 218, 219, 220
    cA0, cA1, cB0, cB1, cB2 = 221, 222, 223, 224, 225
    BIAS = 228
    a(f"""
    s_lshr_b32 s31, s3, 1                   ; wm
    s_and_b32 s32, s3, 1                    ; wn
    v_and_b32 v3, 15, v2                    ; i
    v_lshrrev_b32 v4, 4, v2                 ; g
    s_mul_i32 s33, s29, 448
    s_lshl_b32 s34, s32, 8
    s_add_u32 s34, s34, s33
    s_lshl_b32 s35, s32, 5
    s_add_u32 s35, s35, s33
    s_add_u32 s35, s35, 192                 ; (6+wn)*32
    v_lshlrev_b32 v5, 3, v4                 ; g*8 bytes
    """)
    for t in range(6):
        a(f"buffer_load_dwordx2 v[{BIAS+2*t}:{BIAS+2*t+1}], v5, s[16:19], s34 offen offset:{t*32}")
    a(f"buffer_load_dwordx2 v[{BIAS+12}:{BIAS+13}], v5, s[16:19], s35 offen")
    if opt.get("touch"):
        a(f"""
        s_lshl_b32 s40, s28, 3
        s_lshl_b32 s41, s31, 2
        s_add_u32 s40, s40, s41
        s_mul_i32 s40, s40, 112
        s_mul_i32 s41, s29, 7
        s_add_u32 s40, s40, s41
        s_mul_i32 s41, s32, 3
        s_add_u32 s40, s40, s41
        s_lshl_b32 s40, s40, 10
        v_and_b32 v14, 7, v2
        v_lshlrev_b32 v14, 7, v14
        v_lshlrev_b32 v15, 4, v2
        v_and_b32 v13, 15, v2
        v_lshlrev_b32 v13, 6, v13
        """)
    if opt.get("prefetch"):
        a(f"""
        s_lshr_b32 s50, s27, 3
        s_lshl_b32 s50, s50, 5
        s_lshl_b32 s51, s28, 7
        s_add_u32 s50, s50, s51              ; row0
        v_and_b32 v8, 31, v2
        v_add_u32 v8, s50, v8
        v_lshlrev_b32 v8, 11, v8
        v_lshrrev_b32 v9, 5, v2
        v_lshl_add_u32 v8, v9, 7, v8         ; A voff
        s_and_b32 s50, s27, 7
        s_lshl_b32 s50, s50, 3
        v_bfe_u32 v10, v2, 2, 3
        v_add_u32 v10, s50, v10
        v_lshl_add_u32 v10, v9, 6, v10
        v_mul_u32_u24 v10, 7168, v10
        v_and_b32 v11, 3, v2
        v_lshl_add_u32 v10, v11, 7, v10
        v_add_u32 v10, s33, v10              ; + tile_n*448
        s_lshl_b32 s50, s3, 8
        s_mul_i32 s51, s3, {2*64*7168}
        """)
        for q in range(2):
            a(f"buffer_load_dword v{12+2*q}, v8, s[4:7], s50 offen")
            a(f"buffer_load_dword v{13+2*q}, v10, s[8:11], s51 offen")
            a(f"s_add_u32 s50, s50, 1024")
            a(f"s_add_u32 s51, s51, {8*64*7168}")
    a(f"""
    v_lshrrev_b32 v6, 1, v3                 ; f = i>>1
    v_xor_b32 v6, v6, v4                    ; x0
    s_lshl_b32 s36, s31, 13                 ; wm*64*128
    v_lshlrev_b32 v7, 7, v3                 ; i*128
    v_add_u32 v7, s36, v7
    v_lshl_add_u32 v{vA0}, v6, 4, v7
    v_xor_b32 v6, 4, v6
    v_lshl_add_u32 v{vA1}, v6, 4, v7
    ; B bases
    v_lshrrev_b32 v6, 2, v3                 ; r
    v_lshl_add_u32 v6, v4, 3, v6            ; 8g+r
    v_mul_u32_u24 v6, 448, v6
    v_and_b32 v7, 3, v2
    v_lshl_add_u32 v6, v7, 3, v6            ; + c*8
    v_add_u32 v6, 16384, v6
    v_and_b32 v7, 1, v4
    v_lshlrev_b32 v7, 5, v7                 ; (g&1)*32
    s_lshl_b32 s36, s32, 8                  ; wn*256
    v_add_u32 v8, s36, v6
    v_add_u32 v{vB0}, v8, v7                ; even T
    v_sub_u32 v{vB1}, v8, v7                ; odd T
    s_add_u32 s36, s32, 6
    v_and_b32 v7, 1, v4
    v_xor_b32 v7, s36, v7
    v_lshl_add_u32 v{vB2}, v7, 5, v6
    s_mov_b32 s37, 0
    s_mov_b32 s38, 0                        ; k counter
    s_waitcnt vmcnt({4 if opt.get("prefetch") else 0})
    """)
    for t in range(7):
        a(f"v_lshlrev_b32 v{ACC+t*4+0}, 16, v{BIAS+2*t}")
        a(f"v_and_b32 v{ACC+t*4+1}, 0xffff0000, v{BIAS+2*t}")
        a(f"v_lshlrev_b32 v{ACC+t*4+2}, 16, v{BIAS+2*t+1}")
        a(f"v_and_b32 v{ACC+t*4+3}, 0xffff0000, v{BIAS+2*t+1}")
    for mt in range(1, 4):
        for r in range(28):
            a(f"v_mov_b32 v{ACC+mt*28+r}, v{ACC+r}")

    def reads(S, kk):
        out = []
        ca = cA0 if kk == 0 else cA1
        def rb(t):
            base = cB2 if t == 6 else (cB0 if t % 2 == 0 else cB1)
            toff = 0 if t == 6 else t * 32
            return [f"ds_read_b64_tr_b16 v[{S+16+t*4+2*h}:{S+16+t*4+2*h+1}], v{base} offset:{(32*kk+4*h)*448+toff}" for h in range(2)]
        def ra(mt):
            return [f"ds_read_b128 v[{S+mt*4}:{S+mt*4+3}], v{ca} offset:{mt*2048}"]
        out += ra(0) + rb(0) + rb(1) + ra(1) + rb(2) + rb(3) + ra(2) + rb(4) + rb(5) + ra(3) + rb(6)
        return [] if no_dsread else out
    def mfmas(S):
        out = []
        for mt in range(4):
            for t in range(7):
                c = ACC + (mt * 7 + t) * 4
                out.append(f"v_mfma_f32_16x16x32_bf16 v[{c}:{c+3}], v[{S+16+t*4}:{S+16+t*4+3}], v[{S+mt*4}:{S+mt*4+3}], v[{c}:{c+3}]")
        return [] if no_mfma else out
    def setcur():
        return [f"v_add_u32 v{c}, s37, v{b}" for c, b in ((cA0, vA0), (cA1, vA1), (cB0, vB0), (cB1, vB1), (cB2, vB2))]
    for s in setcur(): a(s)
    if opt.get("prio"): a(f"s_setprio {opt['prio']}")
    a("s_barrier")
    st(1)
    for s in reads(FX, 0): a(s)
    L_loop = name + "_cloop"
    a.label(L_loop)
    a("s_waitcnt lgkmcnt(0)")
    for s in interleave(mfmas(FX), reads(FY, 1)): a(s)
    if opt.get("touch"):
        a(f"""
        s_lshr_b32 s41, s38, 2
        s_mul_i32 s41, s41, {112*1024}
        s_and_b32 s42, s38, 3
        s_lshl_b32 s42, s42, 10
        s_add_u32 s41, s41, s42
        s_add_u32 s41, s41, s40
        {"buffer_store_dword v14, v14, s[12:15], s41 offen sc1" if opt["touch"] == 1 else ("buffer_store_dwordx4 v[12:15], v15, s[12:15], s41 offen sc1" if opt["touch"] == 2 else "buffer_store_dword v13, v13, s[12:15], s41 offen sc1")}
        """)
    a(f"""
    s_add_u32 s37, s37, {STAGE}
    s_cmp_eq_u32 s37, {STAGE*NBUF}
    s_cselect_b32 s37, 0, s37
    """)
    for s in setcur(): a(s)
    a("""
    s_waitcnt lgkmcnt(0)
    s_barrier
    """)
    for s in interleave(mfmas(FY), reads(FX, 0)): a(s)
    a(f"""
    s_add_u32 s38, s38, 1
    s_cmp_lt_u32 s38, 16
    s_cbranch_scc1 {L_loop}
    s_waitcnt lgkmcnt(0)
    """)
    if opt.get("touch"): a("s_waitcnt vmcnt(0)\ns_barrier")
    st(2)
    a(f"""
    s_lshl_b32 s40, s28, 3                  ; tile_m*8
    s_lshl_b32 s41, s31, 2
    s_add_u32 s40, s40, s41
    s_mul_i32 s40, s40, 112
    s_mul_i32 s41, s29, 7
    s_add_u32 s40, s40, s41                 ; + kb0
    s_add_u32 s42, s40, 3
    s_lshl_b32 s42, s42, 10
    s_lshl_b32 s41, s32, 3
    s_add_u32 s42, s42, s41
    s_lshl_b32 s41, s32, 2
    s_add_u32 s40, s40, s41
    s_lshl_b32 s40, s40, 10
    v_lshlrev_b32 v5, 4, v2                 ; lane*16
    s_mov_b32 s43, 0x3fb8aa3b               ; log2(e)
    v_mov_b32 v8, s43
    v_mov_b32 v9, s43
    s_nop 7
    """)
    T0 = 128
    def mish_group(regs, tmp):
        n = len(regs)
        o = []
        if opt.get("pk"):
            for i in range(0, n, 2): o.append(f"v_pk_mul_f32 v[{tmp+i}:{tmp+i+1}], v[{regs[i]}:{regs[i]+1}], v[8:9]")
            for i, r in enumerate(regs): o.append(f"v_exp_f32 v{tmp+i}, v{tmp+i}")
            for i in range(0, n, 2): o.append(f"v_pk_add_f32 v[{tmp+i}:{tmp+i+1}], v[{tmp+i}:{tmp+i+1}], 1.0 op_sel_hi:[1,0]")
            for i in range(0, n, 2): o.append(f"v_pk_fma_f32 v[{tmp+i}:{tmp+i+1}], v[{tmp+i}:{tmp+i+1}], v[{tmp+i}:{tmp+i+1}], 1.0 op_sel_hi:[1,1,0]")
            for i, r in enumerate(regs): o.append(f"v_rcp_f32 v{tmp+i}, v{tmp+i}")
            for i in range(0, n, 2): o.append(f"v_pk_fma_f32 v[{tmp+i}:{tmp+i+1}], v[{tmp+i}:{tmp+i+1}], -2.0, 1.0 op_sel_hi:[1,0,0]")
            for i in range(0, n, 2): o.append(f"v_pk_mul_f32 v[{regs[i]}:{regs[i]+1}], v[{regs[i]}:{regs[i]+1}], v[{tmp+i}:{tmp+i+1}]")
            return o
        for i, r in enumerate(regs): o.append(f"v_mul_f32 v{tmp+i}, s43, v{r}")
        for i, r in enumerate(regs): o.append(f"v_exp_f32 v{tmp+i}, v{tmp+i}")
        for i, r in enumerate(regs): o.append(f"v_add_f32 v{tmp+i}, 1.0, v{tmp+i}")
        for i, r in enumerate(regs): o.append(f"v_fma_f32 v{tmp+i}, v{tmp+i}, v{tmp+i}, 1.0")
        for i, r in enumerate(regs): o.append(f"v_rcp_f32 v{tmp+i}, v{tmp+i}")
        for i, r in enumerate(regs): o.append(f"v_fma_f32 v{tmp+i}, -2.0, v{tmp+i}, 1.0")
        for i, r in enumerate(regs): o.append(f"v_mul_f32 v{r}, v{r}, v{tmp+i}")
        return o
    PK = 160
    pk = 0
    for mt in range(4):
        for p in range(4):
            if p < 3:
                c = ACC + (mt * 7 + 2 * p) * 4
                regs = list(range(c, c + 8))
            else:
                c = ACC + (mt * 7 + 6) * 4
                regs = list(range(c, c + 4))
            if not no_epi:
                for s in mish_group(regs, T0): a(s)
            d = PK + (pk % 8) * 4; pk += 1
            for i in range(len(regs) // 2):
                a(f"v_cvt_pk_bf16_f32 v{d+i}, v{regs[2*i]}, v{regs[2*i+1]}")
            if p < 3:
                a(f"buffer_store_dwordx4 v[{d}:{d+3}], v5, s[12:15], s40 offen offset:{p*1024} {opt.get('stf','')}")
            else:
                a(f"buffer_store_dwordx2 v[{d}:{d+1}], v5, s[12:15], s42 offen {opt.get('stf','')}")
        if mt < 3:
            a(f"s_add_u32 s40, s40, {112*1024}")
            a(f"s_add_u32 s42, s42, {112*1024}")
    st(3)
    if stamp: a("s_waitcnt vmcnt(0)")
    st(4)
    st_out(5)
    a("s_endpgm")
    a.label(L_loader)
    VA = 16
    VB = 20
    a(f"""
    s_sub_u32 s31, s3, 4                    ; lw
    s_setprio {opt.get("lprio", 0)}
    s_lshl_b32 s32, s31, 8                  ; lw*4*64
    v_add_u32 v3, s32, v2
    s_lshl_b32 s33, s28, 18                 ; tile_m*128*2048
    """)
    for ii in range(4):
        a(f"""
        v_add_u32 v4, {ii*64}, v3
        v_lshrrev_b32 v5, 3, v4             ; row
        v_and_b32 v6, 7, v4                 ; pc
        v_lshrrev_b32 v7, 1, v5
        v_and_b32 v7, 7, v7
        v_xor_b32 v6, v6, v7
        v_lshlrev_b32 v5, 11, v5
        v_lshl_add_u32 v5, v6, 4, v5
        v_add_u32 v{VA+ii}, s33, v5
        """)
    a(f"""
    s_mul_i32 s32, s31, 448
    v_add_u32 v3, s32, v2
    s_mul_i32 s33, s29, 448
    s_movk_i32 s34, 2341
    """)
    for ii in range(7):
        a(f"""
        v_add_u32 v4, {ii*64}, v3
        v_mul_u32_u24 v5, s34, v4
        v_lshrrev_b32 v5, 16, v5            ; k
        v_mul_u32_u24 v6, 28, v5
        v_sub_u32 v6, v4, v6                ; pc
        v_lshrrev_b32 v7, 2, v5
        v_and_b32 v7, 2, v7
        v_xor_b32 v6, v6, v7
        v_mul_u32_u24 v5, 7168, v5
        v_lshl_add_u32 v5, v6, 4, v5
        v_add_u32 v{VB+ii}, s33, v5
        """)
    if opt.get("linear"):
        a("s_lshl_b32 s32, s28, 14\ns_lshl_b32 s33, s31, 12\ns_add_u32 s32, s32, s33\nv_lshlrev_b32 v3, 4, v2\nv_add_u32 v4, s32, v3")
        if opt["linear"] & 1:
            for ii in range(4): a(f"v_add_u32 v{VA+ii}, {ii*1024}, v4")
        a("s_mul_i32 s32, s29, 28672\ns_mul_i32 s33, s31, 7168\ns_add_u32 s32, s32, s33\nv_add_u32 v4, s32, v3")
        if opt["linear"] & 2:
            for ii in range(7): a(f"v_add_u32 v{VB+ii}, {ii*1024}, v4")
    a(f"""
    s_lshl_b32 s35, s31, 12
    s_mul_i32 s36, s31, 7168
    s_add_u32 s36, s36, 16384
    s_mov_b32 s37, 0
    s_mov_b32 s38, 0                        ; A soffset
    s_mov_b32 s39, 0                        ; B soffset
    """)
    def issue():
        if not no_dma:
            a("s_add_u32 m0, s37, s35")
            for ii in range(4):
                a("s_nop 0")
                a(f"buffer_load_dwordx4 v{VA+ii}, s[4:7], s38 offen lds")
                if ii < 3: a("s_add_u32 m0, m0, 1024")
            a("s_add_u32 m0, s37, s36")
            for ii in range(7):
                a("s_nop 0")
                a(f"buffer_load_dwordx4 v{VB+ii}, s[8:11], s39 offen lds")
                if ii < 6: a("s_add_u32 m0, m0, 1024")
        a(f"""
        s_add_u32 s38, s38, {0 if opt.get("samek") else 128}
        s_add_u32 s39, s39, {0 if opt.get("samek") else 64*7168}
        s_add_u32 s37, s37, {STAGE}
        s_cmp_eq_u32 s37, {STAGE*NBUF}
        s_cselect_b32 s37, 0, s37
        """)
    issue(); issue(); issue()
    a("""
    s_waitcnt vmcnt(22)
    s_barrier
    s_mov_b32 s40, 1
    """)
    L_ll = name + "_lloop"
    a.label(L_ll)
    a("""
    s_waitcnt vmcnt(11)
    s_barrier
    """)
    issue()
    for i in range(opt.get("dummy", 0)):
        a(f"v_fma_f32 v{40+i%16}, v{40+i%16}, v{60+i%8}, v{70+i%8}")
    a(f"""
    s_add_u32 s40, s40, 1
    s_cmp_lt_u32 s40, 14
    s_cbranch_scc1 {L_ll}
    s_waitcnt vmcnt(11)
    s_barrier
    s_waitcnt vmcnt(0)
    s_barrier
    """)
    a.label(L_end)
    a("s_endpgm")
    return descriptor(name, 256)
```

```python
from asmlib import *
from layout import *
import tables as T

LDS_BYTES = 16384 + 16384

def table_srd(a, d, tmp):
    a(f"s_getpc_b64 s[{tmp}:{tmp+1}]")
    a(f"s_add_u32 s{tmp}, s{tmp}, fft_tab@rel32@lo+4")
    a(f"s_addc_u32 s{tmp+1}, s{tmp+1}, fft_tab@rel32@hi+12")
    srd(a, d, tmp, tmp + 1, T.TABLE_BYTES)

def load_set(a, dst, voff, srdreg, soff, base):
    for qd in range(8):
        a(f"buffer_load_dwordx4 v[{dst+4*qd}:{dst+4*qd+3}], v{voff}, s[{srdreg}:{srdreg+3}], {soff[qd//4]} offen offset:{(qd%4)*1024}")

def twiddle_pack(a, re, im, tc, ts, out, t0, t1):
    for r in range(16):
        a(f"v_mul_f32 v{t0+(r%4)}, v{re+r}, v{tc+r}")
        a(f"v_mul_f32 v{t1+(r%4)}, v{im+r}, v{tc+r}")
        a(f"v_fmac_f32 v{t0+(r%4)}, v{im+r}, v{ts+r}")
        a(f"v_fma_f32 v{t1+(r%4)}, -v{re+r}, v{ts+r}, v{t1+(r%4)}")
        a(f"v_cvt_pk_bf16_f32 v{out+r}, v{t0+(r%4)}, v{t1+(r%4)}")

def mm(a, D, A, B, first=True):
    for j in range(4):
        c = "0" if (j == 0 and first) else f"v[{D}:{D+15}]"
        a(f"v_mfma_f32_32x32x16_bf16 v[{D}:{D+15}], v[{A+4*j}:{A+4*j+3}], v[{B+4*j}:{B+4*j+3}], {c}")

def gen_k0(a, name, opt=None):
    opt = opt or {}
    S = Stamper(a, opt.get("stamp"), 70, 46, 47, 4, 50, STAMP_OFF)
    kernel_begin(a, name)
    L_end = name + "_end"
    a(f"""
    s_cmp_ge_u32 s2, 256
    s_cbranch_scc1 {L_end}
    """)
    S.st(0)
    a(f"""
    s_load_dwordx4 s[40:43], s[0:1], 0      ; x, w_r
    s_load_dwordx2 s[44:45], s[0:1], 16     ; w_i
    s_load_dwordx2 s[46:47], s[0:1], 72     ; ws
    s_load_dwordx2 s[98:99], s[0:1], 32     ; w1
    s_load_dwordx2 s[100:101], s[0:1], 48   ; w2
    v_lshrrev_b32 v2, 6, v0
    v_and_b32 v1, 63, v0                    ; lane
    s_and_b32 s48, s2, 7                    ; q
    s_lshr_b32 s49, s2, 3                   ; n2 / m1
    v_readfirstlane_b32 s3, v2              ; wave i
    v_lshlrev_b32 v3, 4, v1                 ; lane*16
    """)
    table_srd(a, 4, 50)
    for nm, dst, s0 in (("K0B1", 64, 52), ("K0TW", 96, 54), ("F", 128, 56), ("K0SP", 160, 58)):
        a(f"s_mov_b32 s{s0}, {T.SETS[nm]}")
        a(f"s_mov_b32 s{s0+1}, {T.SETS[nm]+4096}")
    a(f"""
    s_lshl_b32 s60, s48, 2
    s_add_u32 s60, s60, s3                  ; n1
    s_lshl_b32 s60, s60, 5
    s_add_u32 s60, s60, s49                 ; n
    s_lshl_b32 s60, s60, 11
    s_add_u32 s61, s60, {1024*2048}
    s_waitcnt lgkmcnt(0)
    """)
    S.st(1)
    srd(a, 8, 40, 41, XN_BYTES)
    a(f"""
    buffer_load_dwordx4 v[16:19], v3, s[8:11], s60 offen
    buffer_load_dwordx4 v[20:23], v3, s[8:11], s60 offen offset:1024
    buffer_load_dwordx4 v[24:27], v3, s[8:11], s61 offen
    buffer_load_dwordx4 v[28:31], v3, s[8:11], s61 offen offset:1024
    """)
    pf = opt.get("pf", 64)
    if pf:
        srd(a, 12, 98, 99, 3584 * 1024 * 2)
        srd(a, 16, 100, 101, 3584 * 1024 * 2)
        a(f"s_mul_i32 s62, s2, 28672")
        a(f"v_mul_u32_u24 v4, {pf}, v0")
        n = 28672 // pf
        for i in range((n + 255) // 256):
            if n - i * 256 < 256:
                a(f"v_cmp_gt_u32 vcc, {n - i*256}, v0")
                a("s_and_saveexec_b64 s[64:65], vcc")
                a(f"s_cbranch_execz {name}_pfskip")
            a(f"buffer_load_dword v{234+2*i}, v4, s[12:15], s62 offen")
            a(f"buffer_load_dword v{235+2*i}, v4, s[16:19], s62 offen")
            a(f"s_add_u32 s62, s62, {256*pf}")
        a.label(f"{name}_pfskip")
        a("s_mov_b64 exec, -1")
    load_set(a, 64, 3, 4, ("s52", "s53"), 0)
    load_set(a, 96, 3, 4, ("s54", "s55"), 0)
    load_set(a, 128, 3, 4, ("s56", "s57"), 0)
    load_set(a, 160, 3, 4, ("s58", "s59"), 0)
    srd(a, 12, 42, 43, 2048 * 513 * 2)
    srd(a, 16, 44, 45, 2048 * 513 * 2)
    srd(a, 20, 46, 47, XN_BYTES, XN_OFF)
    srd(a, 24, 46, 47, 4 * MB, P_OFF)
    srd(a, 28, 46, 47, 4 * MB, WT_OFF)
    srd(a, 32, 46, 47, 1 * MB, G_OFF)
    srd(a, 36, 46, 47, 256 * 1024, FLAG_OFF)
    WV = 224
    for hf in range(2):
        fl, nf, s2c, jo, sg = (WV + 5 * hf + i for i in range(5))
        a(f"""
        v_add_u32 v4, {1+256*hf}, v0            ; sc
        v_lshlrev_b32 v{s2c}, 1, v4
        v_and_b32 v5, 31, v4                    ; sc%32
        v_lshrrev_b32 v6, 5, v4                 ; sc/32
        v_cmp_lt_u32 vcc, 16, v5                ; mirror
        v_sub_u32 v7, 32, v5
        v_sub_u32 v8, 31, v6
        v_cndmask_b32 v{fl}, 0, 1, vcc
        v_cndmask_b32 v{nf}, 1, 0, vcc
        v_cndmask_b32 v5, v5, v7, vcc           ; k1
        v_cndmask_b32 v6, v6, v8, vcc           ; k2
        v_lshlrev_b32 v{sg}, 31, v{fl}
        v_and_b32 v7, 15, v4
        v_lshrrev_b32 v8, 4, v4
        v_cmp_eq_u32 vcc, 0, v7                 ; special
        v_subrev_u32 v8, 1, v8                  ; sc/16-1
        s_nop 0
        v_cndmask_b32 v5, v5, 0, vcc
        v_cndmask_b32 v6, v6, v8, vcc
        v_lshl_add_u32 v5, v5, 5, v6            ; k1*32+k2
        v_lshlrev_b32 v{jo}, 12, v5
        """)
    a(f"""
    s_lshl_b32 s62, s49, 1
    s_lshl_b32 s63, s48, 8
    s_add_u32 s62, s62, s63                 ; m base = 2*m1 + 256 q
    """)
    for e in range(4):
        hf, ab = e >> 1, e & 1
        fl, nf, s2c, jo, sg = (WV + 5 * hf + i for i in range(5))
        for i in range(4):
            a(f"""
            s_add_u32 s63, s62, {ab + 64*i}
            s_sub_u32 s64, 2048, s63
            s_and_b32 s64, s64, 2047
            s_mul_i32 s63, s63, 1026
            s_mul_i32 s64, s64, 1026
            v_mad_u32_u24 v4, v{fl}, s64, v{s2c}
            v_mad_u32_u24 v4, v{nf}, s63, v4
            buffer_load_ushort v{192+4*e+i}, v4, s[12:15], 0 offen
            buffer_load_ushort v{208+4*e+i}, v4, s[16:19], 0 offen
            """)
    a(f"""
    v_mov_b32 v4, 0
    v_lshlrev_b32 v5, 2, v0
    s_lshl_b32 s63, s2, 10
    buffer_store_dword v4, v5, s[36:39], s63 offen
    s_lshl_b32 s63, s2, 2
    s_add_u32 s63, s63, s3
    s_lshr_b32 s64, s63, 7                  ; dgroup
    s_and_b32 s65, s63, 3                   ; dtl
    s_lshl_b32 s64, s64, 2
    s_add_u32 s64, s64, s65
    s_lshl_b32 s64, s64, 4                  ; d base
    s_bfe_u32 s65, s63, 0x50002             ; ks
    s_lshl_b32 s65, s65, 4
    v_and_b32 v4, 15, v1
    v_add_u32 v4, s64, v4                   ; d
    v_lshrrev_b32 v5, 4, v1
    v_lshl_add_u32 v5, v5, 2, s65
    s_lshl_b32 s63, s63, 10
    s_mov_b32 s66, 0x3a800000               ; 1/1024
    """)
    for jj in range(4):
        a(f"""
        v_add_u32 v6, {jj}, v5                  ; cidx
        v_and_b32 v7, 31, v6                    ; k2
        v_bfe_u32 v8, v6, 5, 3                  ; k1>>1
        v_lshrrev_b32 v9, 8, v6                 ; parity
        v_lshl_add_u32 v8, v8, 1, v9            ; k1
        v_lshl_add_u32 v9, v7, 5, v8            ; k1+32k2
        v_lshlrev_b32 v7, 4, v7
        v_add_u32 v7, 16, v7                    ; 16(k2+1)
        v_cmp_eq_u32 vcc, 0, v8
        s_nop 1
        v_cndmask_b32 v9, v9, v7, vcc           ; k
        v_mul_u32_u24 v7, v9, v4
        v_and_b32 v7, 1023, v7
        v_cvt_f32_u32 v7, v7
        v_mul_f32 v7, s66, v7
        v_cmp_eq_u32 vcc, 512, v9
        v_cos_f32 v8, v7
        v_sin_f32 v7, v7
        v_mul_f32 v9, 0.5, v8
        v_cndmask_b32 v8, v8, v9, vcc
        v_cvt_pk_bf16_f32 v{12+jj}, v8, -v7
        """)
    a("buffer_store_dwordx4 v[12:15], v3, s[32:35], s63 offen")
    a("s_waitcnt vmcnt(63)")
    S.st(2)
    X = 16; F32 = 32
    for rho in range(2):
        for w in range(8):
            a(f"v_lshlrev_b32 v{F32+16*rho+2*w}, 16, v{X+8*rho+w}")
            a(f"v_and_b32 v{F32+16*rho+2*w+1}, 0xffff0000, v{X+8*rho+w}")
    def reduce2(r0, r1, s0, s1):
        for sh in ("row_ror:8", "row_ror:4", "row_ror:2", "row_ror:1"):
            a("s_nop 0")
            a(f"v_add_f32_dpp v{r0}, v{r0}, v{r0} {sh} row_mask:0xf bank_mask:0xf")
            a(f"v_add_f32_dpp v{r1}, v{r1}, v{r1} {sh} row_mask:0xf bank_mask:0xf")
        for sh, m in (("row_bcast:15", "0xa"), ("row_bcast:31", "0xc")):
            a("s_nop 0")
            a(f"v_add_f32_dpp v{r0}, v{r0}, v{r0} {sh} row_mask:{m} bank_mask:0xf")
            a(f"v_add_f32_dpp v{r1}, v{r1}, v{r1} {sh} row_mask:{m} bank_mask:0xf")
        a("s_nop 0")
        a(f"v_readlane_b32 s{s0}, v{r0}, 63")
        a(f"v_readlane_b32 s{s1}, v{r1}, 63")
        a("s_nop 1")
    for rho in range(2):
        a(f"v_add_f32 v{4+rho}, v{F32+16*rho}, v{F32+16*rho+1}")
        for w in range(2, 16):
            a(f"v_add_f32 v{4+rho}, v{4+rho}, v{F32+16*rho+w}")
    a("s_nop 0")
    reduce2(4, 5, 64, 65)
    a(f"""
    v_mov_b32 v6, s66
    v_mul_f32 v4, s64, v6                   ; mean0
    v_mul_f32 v5, s65, v6                   ; mean1
    """)
    for rho in range(2):
        a(f"v_sub_f32 v8, v{F32+16*rho}, v{4+rho}")
        a(f"v_mul_f32 v{10+rho}, v8, v8")
        for w in range(1, 16):
            a(f"v_sub_f32 v8, v{F32+16*rho+w}, v{4+rho}")
            a(f"v_fmac_f32 v{10+rho}, v8, v8")
    a("s_nop 0")
    reduce2(10, 11, 64, 65)
    a(f"""
    v_mul_f32 v10, s64, v6                  ; var0
    v_mul_f32 v11, s65, v6
    v_cvt_pk_bf16_f32 v4, v4, v5
    v_cvt_pk_bf16_f32 v10, v10, v11
    v_and_b32 v5, 0xffff0000, v4
    v_lshlrev_b32 v4, 16, v4
    v_and_b32 v11, 0xffff0000, v10
    v_lshlrev_b32 v10, 16, v10
    v_add_f32 v10, 0x3727c5ac, v10          ; +1e-5
    v_add_f32 v11, 0x3727c5ac, v11
    v_cvt_pk_bf16_f32 v10, v10, v11
    v_and_b32 v11, 0xffff0000, v10
    v_lshlrev_b32 v10, 16, v10
    v_sqrt_f32 v10, v10
    v_sqrt_f32 v11, v11
    s_nop 0
    v_cvt_pk_bf16_f32 v10, v10, v11
    v_and_b32 v11, 0xffff0000, v10
    v_lshlrev_b32 v10, 16, v10
    v_rcp_f32 v10, v10
    v_rcp_f32 v11, v11
    """)
    for rho in range(2):
        for w in range(8):
            f0 = F32 + 16 * rho + 2 * w
            a(f"""
            v_sub_f32 v{f0}, v{f0}, v{4+rho}
            v_sub_f32 v{f0+1}, v{f0+1}, v{4+rho}
            v_cvt_pk_bf16_f32 v8, v{f0}, v{f0+1}
            v_lshlrev_b32 v{f0}, 16, v8
            v_and_b32 v{f0+1}, 0xffff0000, v8
            v_mul_f32 v{f0}, v{f0}, v{10+rho}
            v_mul_f32 v{f0+1}, v{f0+1}, v{10+rho}
            v_cvt_pk_bf16_f32 v{X+8*rho+w}, v{f0}, v{f0+1}
            """)
    a(f"""
    s_lshl_b32 s64, s3, 12
    v_add_u32 v4, s64, v3
    buffer_store_dwordx4 v[16:19], v3, s[20:23], s60 offen
    buffer_store_dwordx4 v[20:23], v3, s[20:23], s60 offen offset:1024
    buffer_store_dwordx4 v[24:27], v3, s[20:23], s61 offen
    buffer_store_dwordx4 v[28:31], v3, s[20:23], s61 offen offset:1024
    ds_write_b128 v4, v[16:19]
    ds_write_b128 v4, v[20:23] offset:1024
    ds_write_b128 v4, v[24:27] offset:2048
    ds_write_b128 v4, v[28:31] offset:3072
    ; tr read address: (8h + r)*64 + (16(G%2)+4c)*2
    v_lshrrev_b32 v5, 5, v1                 ; h
    v_bfe_u32 v6, v1, 2, 2                  ; r
    v_lshl_add_u32 v5, v5, 3, v6
    v_lshlrev_b32 v5, 6, v5
    v_bfe_u32 v6, v1, 4, 1
    v_lshl_add_u32 v5, v6, 5, v5
    v_and_b32 v6, 3, v1
    v_lshl_add_u32 v5, v6, 3, v5
    v_add_u32 v5, s64, v5
    s_waitcnt lgkmcnt(0)
    """)
    A1 = 240
    for t in range(4):
        for e in range(2):
            a(f"ds_read_b64_tr_b16 v[{A1+4*t+2*e}:{A1+4*t+2*e+1}], v5 offset:{(t//2)*2048 + (16*(t%2)+4*e)*64}")
    a("s_waitcnt vmcnt(38) lgkmcnt(0)")
    S.st(3)
    D1r, D1i = 32, 48
    mm(a, D1r, A1, 64)
    mm(a, D1i, A1, 80)
    a("s_waitcnt vmcnt(6)")
    S.st(4)
    for e in range(4):
        hf, ab = e >> 1, e & 1
        fl, nf, s2c, jo, sg = (WV + 5 * hf + i for i in range(5))
        for i in range(4):
            a(f"v_lshl_or_b32 v{192+4*e+i}, v{208+4*e+i}, 16, v{192+4*e+i}")
            a(f"v_xor_b32 v{192+4*e+i}, v{sg}, v{192+4*e+i}")
    a(f"""
    s_lshl_b32 s64, s48, 9
    s_lshl_b32 s65, s49, 4
    s_add_u32 s64, s64, s65                 ; q*512 + idx*16
    s_add_u32 s65, s64, {512*4096}
    """)
    for e in range(4):
        hf, ab = e >> 1, e & 1
        jo = WV + 5 * hf + 3
        a(f"buffer_store_dwordx4 v[{192+4*e}:{192+4*e+3}], v{jo}, s[28:31], s{64+ab} offen")
    PKD = 16
    PKD = 208
    twiddle_pack(a, D1r, D1i, 96, 112, PKD, 4, 8)
    a("s_nop 1")
    D2r, D2i, Sr, Si = 64, 80, 96, 112
    mm(a, Sr, PKD, 160)
    mm(a, Si, PKD, 176)
    mm(a, D2r, PKD, 128)
    mm(a, D2i, PKD, 144)
    a(f"""
    v_lshrrev_b32 v5, 5, v1
    v_lshlrev_b32 v5, 11, v5                ; 4h*512
    v_and_b32 v6, 31, v1
    v_lshl_add_u32 v5, v6, 4, v5
    s_lshl_b32 s66, s3, 2
    s_add_u32 s66, s66, 16384
    v_add_u32 v5, s66, v5
    v_lshlrev_b32 v6, 4, v0
    v_add_u32 v6, 16384, v6
    v_lshlrev_b32 v7, 12, v0                ; tid*4096
    s_nop 7
    s_mov_b32 exec_hi, 0
    v_mov_b32 v{D2r}, v{Sr}
    v_mov_b32 v{D2r+8}, v{Sr+8}
    v_mov_b32 v{D2i}, v{Si}
    v_mov_b32 v{D2i+8}, v{Si+8}
    s_mov_b32 exec_hi, -1
    """)
    for r in range(16):
        a(f"v_cvt_pk_bf16_f32 v{32+r}, v{D2r+r}, v{D2i+r}")
        a(f"ds_write_b32 v5, v{32+r} offset:{(8*(r//4)+r%4)*512}")
    a("""
    s_waitcnt lgkmcnt(0)
    s_barrier
    """)
    S.st(5)
    for e in range(4):
        a(f"ds_read_b128 v[{48+4*e}:{48+4*e+3}], v6 offset:{e*4096}")
    for e in range(4):
        a(f"s_waitcnt lgkmcnt({0 if opt.get('stamp') else 3-e})")
        a(f"buffer_store_dwordx4 v[{48+4*e}:{48+4*e+3}], v7, s[24:27], s64 offen")
        if e < 3: a(f"s_add_u32 s64, s64, {256*4096}")
    if opt.get("stamp"): a("s_waitcnt vmcnt(0)")
    S.st(6)
    S.out(7)
    a.label(L_end)
    a("s_endpgm")
    return descriptor(name, 256)
```

```python
from asmlib import *
from layout import *

STAGE = 32768
import os
NBUF = int(os.environ.get("G2BUF", "4"))
LDS_BYTES = STAGE * NBUF
NMLP = 28
NDFT = 8

def gen_gemm2(a, name, opt=None):
    opt = opt or {}
    stamp = opt.get("stamp", False)
    PUB_IT = opt.get("pub_it", 1)
    POLL_IT = opt.get("poll_it", 4)
    def st(i):
        if stamp:
            a(f"s_memtime s[{70+4*i}:{71+4*i}]")
            a(f"s_memrealtime s[{72+4*i}:{73+4*i}]")
    def st_out(n):
        if stamp:
            a("s_waitcnt lgkmcnt(0)")
            srd(a, 44, 42, 43, 1 << 20, STAMP_OFF)
            a("s_lshl_b32 s48, s2, 3")
            a("s_add_u32 s48, s48, s3")
            a("s_lshl_b32 s48, s48, 7")
            a("v_mov_b32 v10, 0")
            for i in range(n):
                for q in (0, 1):
                    a(f"v_mov_b32 v11, s{70+4*i+2*q}")
                    a(f"buffer_store_dword v11, v10, s[44:47], s48 offen offset:{i*8+q*4}")
            a("s_waitcnt vmcnt(0)")
    kernel_begin(a, name)
    L_end = name + "_end"; L_comp = name + "_comp"
    a(f"""
    s_cmp_ge_u32 s2, 256
    s_cbranch_scc1 {L_end}
    """)
    st(0)
    a(f"""
    s_load_dwordx2 s[36:37], s[0:1], 0      ; x
    s_load_dwordx4 s[40:43], s[0:1], 48     ; w2, out
    s_load_dwordx2 s[38:39], s[0:1], 72     ; ws
    v_lshrrev_b32 v1, 6, v0
    v_and_b32 v2, 63, v0                    ; lane
    s_and_b32 s50, s2, 1                    ; u
    s_lshr_b32 s51, s2, 3                   ; j
    v_readfirstlane_b32 s3, v1
    s_bfe_u32 s52, s2, 0x10001
    s_lshl_b32 s52, s52, 3
    s_and_b32 s53, s51, 7
    s_add_u32 s52, s52, s53                 ; tile_r
    s_bfe_u32 s53, s2, 0x10002
    s_lshl_b32 s53, s53, 2
    s_lshr_b32 s54, s51, 3
    s_add_u32 s53, s53, s54                 ; tile_c
    v_lshlrev_b32 v3, 4, v2                 ; lane*16
    """)
    if opt.get("map", 0) == 1:
        a("""
        s_bfe_u32 s52, s2, 0x20001
        s_lshl_b32 s52, s52, 2
        s_and_b32 s53, s51, 3
        s_add_u32 s52, s52, s53                 ; tile_r = (x>>1)*4 + (j&3)
        s_lshr_b32 s53, s51, 2                  ; tile_c = j>>2
        """)
    a("s_waitcnt lgkmcnt(0)")
    srd(a, 4, 38, 39, ACT_BYTES, ACT_OFF)
    srd(a, 8, 40, 41, 3584 * 1024 * 2)
    srd(a, 12, 38, 39, 4 * MB, Z_OFF)
    srd(a, 16, 38, 39, 1 * MB, G_OFF)
    srd(a, 20, 36, 37, XN_BYTES)
    srd(a, 24, 42, 43, XN_BYTES)
    srd(a, 28, 38, 39, 8 * MB, EX_OFF)
    srd(a, 32, 38, 39, 256 * 1024, FLAG_OFF)
    a(f"""
    s_mov_b32 s42, s38
    s_mov_b32 s43, s39
    s_cmp_lt_u32 s3, 4
    s_cbranch_scc1 {L_comp}
    """)
    VB = 16
    a(f"""
    s_sub_u32 s55, s3, 4                    ; lw
    s_lshr_b32 s56, s55, 1                  ; ks
    s_xor_b32 s56, s56, s50
    s_lshl_b32 s56, s56, 1
    s_and_b32 s57, s55, 1                   ; half
    s_lshl_b32 s57, s57, 6
    s_add_u32 s56, s56, s57
    s_lshl_b32 s57, s52, 2
    s_add_u32 s56, s56, s57
    s_mul_i32 s56, s56, 112
    s_mul_i32 s57, s50, 56
    s_add_u32 s56, s56, s57
    s_lshl_b32 s56, s56, 10                 ; sA0
    s_add_u32 s57, s56, {112*1024}          ; sA1
    s_mul_i32 s58, s50, {1792*2048}         ; sB
    s_lshl_b32 s59, s55, 12                 ; lw*4096
    s_lshl_b32 s60, s53, 7                  ; tile_c*128
    s_lshl_b32 s61, s55, 15                 ; 16*lw*2048
    s_add_u32 s60, s60, s61
    v_lshrrev_b32 v4, 4, v2                 ; lane/16
    v_and_b32 v5, 15, v2                    ; pc
    """)
    for ii in range(4):
        a(f"""
        v_add_u32 v6, {4*ii}, v4
        v_and_b32 v7, 7, v6
        v_lshlrev_b32 v7, 1, v7
        v_xor_b32 v7, v7, v5                    ; c
        v_and_b32 v8, 7, v7
        v_lshrrev_b32 v7, 3, v7
        v_lshlrev_b32 v6, 11, v6
        v_lshl_add_u32 v6, v8, 4, v6
        v_lshl_add_u32 v6, v7, 10, v6
        v_add_u32 v{VB+ii}, s60, v6
        """)
    ROT = opt.get("rot", 1)
    if ROT:
        msk, mul = (7, 7) if opt.get("map", 0) == 0 else (3, 14)
        a(f"""
        s_and_b32 s66, s51, {msk}
        s_mul_i32 s66, s66, {mul}
        s_lshr_b32 s66, s66, 1                  ; rot
        s_lshl_b32 s67, s66, 11
        s_add_u32 s56, s56, s67
        s_add_u32 s57, s57, s67
        s_lshl_b32 s67, s66, 17
        s_add_u32 s58, s58, s67
        """)
    a(f"""
    s_mov_b32 s62, 0
    s_lshl_b32 s63, s52, 1
    s_add_u32 s63, s63, s50
    s_lshl_b32 s63, s63, 17                 ; nb*131072
    s_lshr_b32 s64, s55, 1
    s_lshl_b32 s64, s64, 16
    s_add_u32 s63, s63, s64
    s_and_b32 s64, s55, 1
    s_lshl_b32 s64, s64, 12
    s_add_u32 s63, s63, s64                 ; sZ
    s_lshl_b32 s64, s53, 17
    s_add_u32 s64, s64, s59                 ; sG
    """)
    def adv():
        a(f"""
        s_add_u32 s62, s62, {STAGE}
        s_cmp_eq_u32 s62, {STAGE*NBUF}
        s_cselect_b32 s62, 0, s62
        """)
    def issue_mlp():
        a(f"""
        s_add_u32 m0, s62, s59
        s_nop 0
        buffer_load_dwordx4 v3, s[4:7], s56 offen {opt.get('apol','')} lds
        buffer_load_dwordx4 v3, s[4:7], s56 offen offset:1024 {opt.get('apol','')} lds
        s_add_u32 m0, m0, 2048
        s_nop 0
        buffer_load_dwordx4 v3, s[4:7], s57 offen {opt.get('apol','')} lds
        buffer_load_dwordx4 v3, s[4:7], s57 offen offset:1024 {opt.get('apol','')} lds
        s_add_u32 m0, m0, {16384-2048}
        """)
        for ii in range(4):
            a("s_nop 0")
            a(f"buffer_load_dwordx4 v{VB+ii}, s[8:11], s58 offen lds")
            if ii < 3: a("s_add_u32 m0, m0, 1024")
        a(f"""
        s_add_u32 s56, s56, {0 if opt.get("samea") else 2048}
        s_add_u32 s57, s57, {0 if opt.get("samea") else 2048}
        s_add_u32 s58, s58, {0 if opt.get("samek") else 64*2048}
        """)
        if ROT:
            a(f"""
            s_add_u32 s66, s66, 1
            s_cmp_eq_u32 s66, 28
            s_cselect_b32 s67, {28*2048}, 0
            s_cselect_b32 s68, {28*64*2048}, 0
            s_sub_u32 s56, s56, s67
            s_sub_u32 s57, s57, s67
            s_sub_u32 s58, s58, s68
            """)
        adv()
    def issue_dft():
        a("s_add_u32 m0, s62, s59")
        a("s_nop 0")
        for ii in range(4):
            a(f"buffer_load_dwordx4 v3, s[12:15], s63 offen offset:{ii*1024} lds")
        a("s_add_u32 m0, m0, 16384")
        a("s_nop 0")
        for ii in range(4):
            a(f"buffer_load_dwordx4 v3, s[16:19], s64 offen offset:{ii*1024} lds")
        a("s_add_u32 s63, s63, 8192")
        a("s_add_u32 s64, s64, 16384")
        adv()
    for _ in range(NBUF): issue_mlp()
    a(f"""
    s_waitcnt vmcnt({8*(NBUF-1)})
    s_barrier
    s_mov_b32 s65, 1
    """)
    L1 = name + "_l1"; L2 = name + "_l2"
    a.label(L1)
    a(f"s_waitcnt vmcnt({8*(NBUF-2)})")
    a("s_barrier")
    issue_mlp()
    a(f"""
    s_add_u32 s65, s65, 1
    s_cmp_le_u32 s65, {NMLP-NBUF}
    s_cbranch_scc1 {L1}
    """)
    a.label(L2)
    a(f"s_waitcnt vmcnt({8*(NBUF-2)})")
    a("s_barrier")
    issue_dft()
    a(f"""
    s_add_u32 s65, s65, 1
    s_cmp_le_u32 s65, {NMLP+NDFT-NBUF}
    s_cbranch_scc1 {L2}
    """)
    for i in range(NBUF - 2, -1, -1):
        a(f"s_waitcnt vmcnt({8*i})")
        a("s_barrier")
    a("s_endpgm")
    a.label(L_comp)
    ACC = 16
    YA = 80
    FX = 112
    FY = 144
    XR = 176
    RC = 192
    bA, bB, bZ, bG = 224, 225, 229, 230
    cA, cB, cZ, cG = 232, 233, 237, 238
    vO = 240
    a(f"""
    s_lshr_b32 s55, s3, 1                   ; wr
    s_and_b32 s56, s3, 1                    ; wc
    v_and_b32 v4, 15, v2                    ; i
    v_lshrrev_b32 v5, 4, v2                 ; g
    s_lshl_b32 s57, s52, 6
    s_lshl_b32 s58, s50, 5
    s_add_u32 s57, s57, s58
    s_lshl_b32 s58, s55, 4
    s_add_u32 s57, s57, s58
    s_lshl_b32 s57, s57, 11
    s_lshl_b32 s58, s53, 7
    s_add_u32 s57, s57, s58
    s_lshl_b32 s58, s56, 6
    s_add_u32 s57, s57, s58
    s_add_u32 s58, s57, {1024*2048}         ; rho=1
    v_lshlrev_b32 v6, 11, v4
    v_lshl_add_u32 v{vO}, v5, 3, v6
    v_and_b32 v7, 1, v5
    v_lshl_add_u32 v6, v7, 5, v6
    v_lshrrev_b32 v7, 1, v5
    v_lshl_add_u32 v{vO+1}, v7, 4, v6
    """)
    for rho in range(2):
        for dl in range(2):
            for dt in range(2):
                t = rho * 4 + dl * 2 + dt
                a(f"buffer_load_dwordx2 v[{XR+2*t}:{XR+2*t+1}], v{vO}, s[20:23], s{57+rho} offen offset:{dl*1024+dt*32}")
    a(f"""
    s_lshl_b32 s59, s55, 11
    v_add_u32 v{bA}, s59, v3
    v_bfe_u32 v6, v2, 2, 2                  ; r
    v_and_b32 v7, 3, v2                     ; c
    v_lshl_add_u32 v8, v5, 2, v6            ; 4g+r
    v_and_b32 v9, 7, v8                     ; x
    v_lshlrev_b32 v8, 8, v8
    v_lshl_add_u32 v8, v7, 3, v8
    v_add_u32 v8, 16384, v8
    s_lshl_b32 s59, s56, 1
    """)
    for tp in range(4):
        dl, dt = tp >> 1, tp & 1
        a(f"""
        s_add_u32 s60, s59, {dl*4+dt}
        v_xor_b32 v10, s60, v9
        v_lshl_add_u32 v{bB+tp}, v10, 5, v8
        """)
    a(f"""
    v_lshl_add_u32 v8, v5, 3, v6            ; 8g+r
    v_lshlrev_b32 v8, 6, v8
    v_and_b32 v9, 1, v7
    v_lshlrev_b32 v9, 5, v9                 ; (c&1)*32
    v_lshrrev_b32 v10, 1, v7
    v_lshl_add_u32 v9, v10, 3, v9
    s_lshl_b32 s60, s55, 4
    v_add_u32 v9, s60, v9                   ; pos
    v_and_b32 v10, 1, v5
    v_lshlrev_b32 v10, 4, v10
    v_xor_b32 v9, v9, v10
    v_add_u32 v{bZ}, v8, v9
    s_lshl_b32 s60, s56, 11
    s_add_u32 s60, s60, 16384
    v_add_u32 v{bG}, s60, v3
    s_mov_b32 s62, 0
    s_mov_b32 s63, 0
    s_lshl_b32 s64, s2, 2
    s_add_u32 s64, s64, s3
    s_xor_b32 s65, s64, 4
    s_lshl_b32 s66, s64, 8
    s_lshl_b32 s67, s65, 8
    s_lshl_b32 s64, s64, 12
    s_lshl_b32 s65, s65, 12
    """)
    PFD = opt.get("pfd", 0)
    if PFD:
        a(f"""
        s_and_b32 s69, s51, 3
        s_lshl_b32 s69, s69, 5
        s_lshl_b32 s68, s3, 3
        s_add_u32 s69, s69, s68
        v_and_b32 v12, 7, v2
        v_add_u32 v12, s69, v12
        v_lshrrev_b32 v13, 1, v12
        v_and_b32 v12, 1, v12
        v_lshlrev_b32 v13, 11, v13
        v_lshl_add_u32 v12, v12, 10, v13
        s_lshl_b32 s69, s53, 7
        v_add_u32 v12, s69, v12
        v_lshrrev_b32 v13, 3, v2
        v_lshl_add_u32 v14, v13, 17, v12
        s_mul_i32 s69, s50, {1792*2048}
        s_add_u32 s69, s69, {NBUF*64*2048}
        """)
        for i in range((PFD - NBUF + 7) // 8):
            a(f"buffer_load_dword v15, v14, s[8:11], s69 offen {opt.get('pfpol','')}")
            a(f"s_add_u32 s69, s69, {8*64*2048}")
        a(f"""
        s_mul_i32 s69, s50, {1792*2048}
        s_add_u32 s69, s69, {PFD*64*2048}
        """)
    for r in range(96):
        a(f"v_mov_b32 v{ACC+r}, 0")
    def setcur(dft):
        if not dft:
            return [f"v_add_u32 v{cA}, s62, v{bA}"] + [f"v_add_u32 v{cB+i}, s62, v{bB+i}" for i in range(4)]
        return [f"v_add_u32 v{cZ}, s62, v{bZ}", f"v_add_u32 v{cG}, s62, v{bG}"]
    def reads(S, kk):
        out = []
        for i in range(4):
            out.append(f"ds_read_b128 v[{S+4*i}:{S+4*i+3}], v{cA} offset:{i*4096+kk*1024}")
            for e in range(2):
                out.append(f"ds_read_b64_tr_b16 v[{S+16+4*i+2*e}:{S+16+4*i+2*e+1}], v{cB+i} offset:{(32*kk+16*e)*256}")
        return out
    def mfmas(S):
        out = []
        for m in range(4):
            for t in range(4):
                c = ACC + (m * 4 + t) * 4
                out.append(f"v_mfma_f32_16x16x32_bf16 v[{c}:{c+3}], v[{S+16+t*4}:{S+16+t*4+3}], v[{S+m*4}:{S+m*4+3}], v[{c}:{c+3}]")
        return out
    def dreads(S, hf):
        out = []
        for q in range(2):
            kst = 2 * hf + q
            for ab in range(2):
                for e in range(2):
                    d = S + 16 * q + 4 * ab + 2 * e
                    out.append(f"ds_read_b64_tr_b16 v[{d}:{d+1}], v{cZ} offset:{ab*8192+kst*2048+e*256}")
            for dt in range(2):
                d = S + 16 * q + 8 + 4 * dt
                out.append(f"ds_read_b128 v[{d}:{d+3}], v{cG} offset:{kst*4096+dt*1024}")
        return out
    def dmfmas(S, p):
        out = []
        for q in range(2):
            for ab in range(2):
                for dt in range(2):
                    c = YA + ((p * 2 + ab) * 2 + dt) * 4
                    z = S + 16 * q + 4 * ab; g = S + 16 * q + 8 + 4 * dt
                    out.append(f"v_mfma_f32_16x16x32_bf16 v[{c}:{c+3}], v[{g}:{g+3}], v[{z}:{z+3}], v[{c}:{c+3}]")
        return out
    advs = [f"s_add_u32 s62, s62, {STAGE}", f"s_cmp_eq_u32 s62, {STAGE*NBUF}", "s_cselect_b32 s62, 0, s62"]
    for s in setcur(False): a(s)
    a("s_barrier")
    st(1)
    for s in reads(FX, 0): a(s)
    L_loop = name + "_cloop"
    a.label(L_loop)
    a("s_waitcnt lgkmcnt(0)")
    for s in interleave(mfmas(FX), reads(FY, 1) + advs): a(s)
    for s in setcur(False): a(s)
    a("s_waitcnt lgkmcnt(0)")
    a("s_barrier")
    pfi = [f"buffer_load_dword v15, v12, s[8:11], s69 offen {opt.get('pfpol','')}", f"s_add_u32 s69, s69, {64*2048}"] if PFD else []
    for s in interleave(mfmas(FY), reads(FX, 0) + pfi): a(s)
    a(f"""
    s_add_u32 s63, s63, 1
    s_cmp_lt_u32 s63, {NMLP-1}
    s_cbranch_scc1 {L_loop}
    """)
    a("s_waitcnt lgkmcnt(0)")
    for s in interleave(mfmas(FX), reads(FY, 1) + advs): a(s)
    for s in setcur(True): a(s)
    a("s_waitcnt lgkmcnt(0)")
    a("s_barrier")
    mf = mfmas(FY); mf = mf[8:] + mf[:8]
    for s in interleave(mf, dreads(FX, 0)): a(s)
    st(2)
    SN = RC + 16
    for t in range(8):
        c = ACC + 32 + 4 * t
        for q in range(2):
            a(f"v_cvt_pk_bf16_f32 v{SN+2*t+q}, v{c+2*q}, v{c+2*q+1}")
            a(f"v_min_u32 v{SN+2*t+q}, -2, v{SN+2*t+q}")
        if t % 2 == 1:
            a(f"buffer_store_dwordx4 v[{SN+2*t-2}:{SN+2*t+1}], v3, s[28:31], s64 offen offset:{(t//2)*1024} sc1")
    def recv():
        for t in range(4):
            a(f"buffer_load_dwordx4 v[{RC+4*t}:{RC+4*t+3}], v3, s[28:31], s65 offen offset:{t*1024} sc1")
    for it in range(NDFT):
        p = it // 4
        a("s_waitcnt lgkmcnt(0)")
        for s in interleave(dmfmas(FX, p), dreads(FY, 1) + advs, per=2): a(s)
        last = it == NDFT - 1
        if not last:
            for s in setcur(True): a(s)
        a("s_waitcnt lgkmcnt(0)")
        if not last: a("s_barrier")
        for s in interleave(dmfmas(FY, p), [] if last else dreads(FX, 0), per=2): a(s)
        if it == POLL_IT:
            st(3)
            recv()
        if it == 2:
            a("s_waitcnt vmcnt(4)")
            for t in range(8):
                a(f"""
                v_lshlrev_b32 v4, 16, v{XR+2*t}
                v_and_b32 v5, 0xffff0000, v{XR+2*t}
                v_lshlrev_b32 v6, 16, v{XR+2*t+1}
                v_and_b32 v7, 0xffff0000, v{XR+2*t+1}
                v_pk_add_f32 v[{ACC+4*t}:{ACC+4*t+1}], v[{ACC+4*t}:{ACC+4*t+1}], v[4:5]
                v_pk_add_f32 v[{ACC+4*t+2}:{ACC+4*t+3}], v[{ACC+4*t+2}:{ACC+4*t+3}], v[6:7]
                """)
    st(4)
    a("s_nop 7")
    def Y(p, ab, dt, r): return YA + ((p * 2 + ab) * 2 + dt) * 4 + r
    for dt in range(2):
        for r in range(0, 4, 2):
            def P(x): return f"v[{x}:{x+1}]"
            a(f"""
            v_pk_add_f32 v[4:5], {P(Y(0,0,dt,r))}, {P(Y(1,0,dt,r))}
            v_pk_add_f32 v[6:7], {P(Y(0,0,dt,r))}, {P(Y(1,0,dt,r))} neg_lo:[0,1] neg_hi:[0,1]
            v_pk_add_f32 v[8:9], {P(Y(0,1,dt,r))}, {P(Y(1,1,dt,r))}
            v_pk_add_f32 v[10:11], {P(Y(0,1,dt,r))}, {P(Y(1,1,dt,r))} neg_lo:[0,1] neg_hi:[0,1]
            """)
            for rho in range(2):
                for dl in range(2):
                    c = ACC + (rho * 4 + dl * 2 + dt) * 4 + r
                    a(f"v_pk_add_f32 {P(c)}, {P(c)}, {P(4+2*dl)}")
                    a(f"v_pk_add_f32 {P(c)}, {P(c)}, {P(8+2*dl)}" + (" neg_lo:[0,1] neg_hi:[0,1]" if rho else ""))
    Lp = name + "_poll"; Lok = name + "_ok"
    a.label(Lp)
    a("s_waitcnt vmcnt(0)")
    a(f"v_max3_u32 v4, v{RC}, v{RC+1}, v{RC+2}")
    for t in range(3, 15, 2):
        a(f"v_max3_u32 v4, v4, v{RC+t}, v{RC+t+1}")
    a(f"v_max_u32 v4, v4, v{RC+15}")
    a(f"""
    v_cmp_eq_u32 vcc, -1, v4
    s_nop 4
    s_cbranch_vccz {Lok}
    """)
    recv()
    a(f"s_branch {Lp}")
    a.label(Lok)
    st(5)
    for t in range(8):
        c = ACC + 4 * t
        a(f"""
        v_lshlrev_b32 v4, 16, v{RC+2*t}
        v_and_b32 v5, 0xffff0000, v{RC+2*t}
        v_lshlrev_b32 v6, 16, v{RC+2*t+1}
        v_and_b32 v7, 0xffff0000, v{RC+2*t+1}
        v_pk_add_f32 v[{c}:{c+1}], v[{c}:{c+1}], v[4:5]
        v_pk_add_f32 v[{c+2}:{c+3}], v[{c+2}:{c+3}], v[6:7]
        v_cvt_pk_bf16_f32 v{SN+2*t}, v{c}, v{c+1}
        v_cvt_pk_bf16_f32 v{SN+2*t+1}, v{c+2}, v{c+3}
        """)
        if t % 2 == 1:
            rho, dl = t >> 2, (t >> 1) & 1
            d = SN + 2 * t - 2
            a(f"""
            s_nop 1
            v_permlane16_swap_b32 v{d}, v{d+2}
            v_permlane16_swap_b32 v{d+1}, v{d+3}
            buffer_store_dwordx4 v[{d}:{d+3}], v{vO+1}, s[24:27], s{57+rho} offen offset:{dl*1024} {opt.get('opol','')}
            """)
    if stamp: a("s_waitcnt vmcnt(0)")
    st(6)
    st_out(7)
    a.label(L_end)
    a("s_endpgm")
    return descriptor(name, 256)
```

```python
from asmlib import *
from layout import *
import tables2 as T

STAGE = 45056
NBUF = 3
SP = STAGE * NBUF
LDS_BYTES = 163840
XB = 2 * STAGE
TB = XB + 16384
PC = SP
EP = SP + 24832
STL = EP + 1920
CSL = EP + 2048
HC = EP + 3072
PUBK = 6
sX, sW1, sTAB, sWS, sWR, sWI, sDBG, sW2, sB1 = 4, 8, 12, 16, 20, 24, 28, 32, 36
def R(s): return f"s[{s}:{s+3}]"
def P2(x): return f"v[{x}:{x+1}]"
def Q4(x): return f"v[{x}:{x+3}]"

class VM:
    def __init__(self, a): self.a = a; self.q = []
    def op(self, s, tag): self.a(s); self.q.append(tag)
    def wait(self, *tags):
        idx = [i for i, t in enumerate(self.q) if t in tags]
        if not idx: return
        last = max(idx)
        n = sum(1 for t in self.q[last + 1:] if t not in ("CS", "INV"))
        self.a(f"s_waitcnt vmcnt({min(n, 63)})")
        self.q = self.q[last + 1:]

def mm(a, D, A, B, n=4):
    for j in range(n):
        c = "0" if j == 0 else f"v[{D}:{D+15}]"
        a(f"v_mfma_f32_32x32x16_bf16 v[{D}:{D+15}], {Q4(A+4*j)}, {Q4(B+4*j)}, {c}")

def twiddle_pack(a, re, im, tc, ts, out, t):
    for r in range(0, 16, 2):
        t0 = t + (r & 2) * 2; t1 = t0 + 2
        a(f"v_pk_mul_f32 {P2(t0)}, {P2(re+r)}, {P2(tc+r)}")
        a(f"v_pk_mul_f32 {P2(t1)}, {P2(im+r)}, {P2(tc+r)}")
        a(f"v_pk_fma_f32 {P2(t0)}, {P2(im+r)}, {P2(ts+r)}, {P2(t0)}")
        a(f"v_pk_fma_f32 {P2(t1)}, {P2(re+r)}, {P2(ts+r)}, {P2(t1)} neg_lo:[1,0,0] neg_hi:[1,0,0]")
        a(f"v_cvt_pk_bf16_f32 v{out+r}, v{t0}, v{t1}")
        a(f"v_cvt_pk_bf16_f32 v{out+r+1}, v{t0+1}, v{t1+1}")

def gen_l1(a, name, opt=None):
    opt = opt or {}
    RSH = opt.get("rsh", 0)
    NCS = 2 << RSH
    PUBK = opt.get("pubk", 6 + RSH)
    stamp = opt.get("stamp")
    S = Stamper(a, stamp, 70, 54, 55, 40, 44, STAMP_OFF, vt=(10, 11))
    kernel_begin(a, name)
    L_end = name + "_end"; L_comp = name + "_comp"
    a(f"""
    s_cmp_ge_u32 s2, 256
    s_cbranch_scc1 {L_end}
    """)
    if stamp != 3: S.st(0)
    a(f"""
    s_load_dwordx4 s[40:43], s[0:1], 0      ; x, w_r
    s_load_dwordx4 s[48:51], s[0:1], 32     ; w1, b1
    s_load_dwordx4 s[52:55], s[0:1], 64
    s_load_dwordx2 s[44:45], s[0:1], 16     ; w_i
    s_load_dwordx2 s[46:47], s[0:1], 48     ; w2
    v_lshrrev_b32 v1, 6, v0
    v_and_b32 v2, 63, v0                    ; lane
    s_and_b32 s56, s2, 7                    ; x / q
    s_lshr_b32 s57, s2, 3                   ; j / idx
    v_readfirstlane_b32 s3, v1
    s_and_b32 s58, s56, 1
    s_lshl_b32 s58, s58, 3
    s_and_b32 s59, s57, 7
    s_add_u32 s58, s58, s59                 ; tile_m
    s_lshr_b32 s59, s56, 1
    s_lshl_b32 s59, s59, 2
    s_lshr_b32 s60, s57, 3
    s_add_u32 s59, s59, s60                 ; tile_n
    v_lshlrev_b32 v3, 4, v2                 ; lane*16
    s_getpc_b64 s[60:61]
    s_add_u32 s60, s60, fft_tab@rel32@lo+4
    s_addc_u32 s61, s61, fft_tab@rel32@hi+12
    """)
    srd(a, sTAB, 60, 61, T.TABLE_BYTES)
    a(f"""
    v_mov_b32 v4, {HC}
    v_mov_b32 v6, 0
    v_mov_b32 v7, 0
    ds_write_b64 v4, v[6:7]
    s_cmp_lt_u32 s3, 4
    s_cbranch_scc1 {L_comp}
    """)
    vm = VM(a)
    VA, VB, VW0, VST, VPR = 16, 20, 28, 30, 31
    a(f"""
    s_sub_u32 s60, s3, 4                    ; lw
    s_lshl_b32 s61, s60, 8
    v_add_u32 v8, s61, v2
    s_lshl_b32 s62, s58, 18
    """)
    for ii in range(4):
        a(f"""
        v_add_u32 v4, {ii*64}, v8
        v_lshrrev_b32 v5, 3, v4
        v_and_b32 v6, 7, v4
        v_bfe_u32 v7, v4, 4, 3
        v_xor_b32 v6, v6, v7
        v_lshlrev_b32 v5, 11, v5
        v_lshl_add_u32 v5, v6, 4, v5
        v_add_u32 v{VA+ii}, s62, v5
        """)
    a(f"""
    v_cmp_lt_u32 vcc, 27, v2
    v_subrev_u32 v4, 28, v2
    s_mul_i32 s62, s59, 448
    s_mul_i32 s63, s60, {16*7168}
    s_add_u32 s62, s62, s63
    v_cndmask_b32 v4, v2, v4, vcc           ; pc
    v_mov_b32 v5, s62
    v_add_u32 v6, 7168, v5
    v_cndmask_b32 v5, v5, v6, vcc
    v_lshl_add_u32 v6, v4, 4, v5
    v_xor_b32 v4, 2, v4
    v_lshl_add_u32 v7, v4, 4, v5
    """)
    for ii in range(8):
        a(f"v_add_u32 v{VB+ii}, {2*ii*7168}, v{6 if ii < 4 else 7}")
    a(f"""
    s_lshl_b32 s62, s60, 12
    s_mul_i32 s63, s60, 7168
    s_add_u32 s63, s63, 16384
    s_and_b32 s64, s57, 7
    s_lshr_b32 s65, s64, {RSH}
    s_lshl_b32 s65, s65, {RSH+1}
    s_and_b32 s66, s64, {(1<<RSH)-1}
    s_lshl_b32 s66, s66, 1
    s_and_b32 s67, s56, 1
    s_add_u32 s66, s66, s67
    s_add_u32 s67, s65, s66
    s_waitcnt lgkmcnt(0)
    s_barrier
    s_setprio {opt.get("hprio", 0)}
    """)
    srd(a, sX, 40, 41, XN_BYTES)
    srd(a, sW1, 48, 49, 1024 * 3584 * 2)
    def issue(k):
        buf = (k % NBUF) * STAGE
        a(f"""
        s_lshl_b32 s68, s65, 7
        s_mul_i32 s69, s65, {64*7168}
        s_add_u32 m0, s62, {buf}
        s_add_u32 s65, s65, 1
        """)
        for ii in range(4):
            vm.op(f"buffer_load_dwordx4 v{VA+ii}, {R(sX)}, s68 offen lds", f"D{k}")
            if ii < 3: a("s_add_u32 m0, m0, 1024\ns_nop 0")
        a(f"s_add_u32 m0, s63, {buf}")
        a("s_mov_b32 exec_hi, 0x00ffffff")
        for ii in range(8):
            vm.op(f"buffer_load_dwordx4 v{VB+ii}, {R(sW1)}, s69 offen lds", f"D{k}")
            if ii < 7: a("s_add_u32 m0, m0, 896\ns_nop 0")
        a("s_mov_b32 exec_hi, -1")
        a("s_and_b32 s65, s65, 15")
    issue(0)
    if stamp == 2: S.st(1)
    srd(a, sWS, 54, 55, WS_SRD_BYTES)
    srd(a, sWR, 42, 43, 2048 * 513 * 2)
    srd(a, sWI, 44, 45, 2048 * 513 * 2)
    srd(a, sDBG, 52, 53, 256)
    srd(a, sW2, 46, 47, 3584 * 1024 * 2)
    a(f"""
    s_lshl_b32 s40, s2, 2
    s_add_u32 s40, s40, s60
    """)
    CSF, CSD, ONE = 128, 160, 176
    a(f"""
    s_lshl_b32 s41, s60, 6
    v_add_u32 v4, s41, v2                   ; t
    v_lshrrev_b32 v5, 4, v4                 ; k2 (hf=0)
    v_and_b32 v6, 15, v4                    ; k1
    v_cmp_eq_u32 vcc, 0, v6
    v_lshl_add_u32 v7, v5, 5, v6
    v_add_u32 v12, 16, v7
    v_cndmask_b32 v12, v7, v12, vcc
    v_lshlrev_b32 v{VW0}, 1, v12
    v_add_u32 v{VW0}, {SP}, v{VW0}
    v_sub_u32 v7, 512, v7                   ; 1024-32(k2+16)-k1
    v_lshlrev_b32 v{VW0+1}, 1, v7
    v_add_u32 v{VW0+1}, {SP}, v{VW0+1}
    v_lshrrev_b32 v7, 3, v4
    v_lshlrev_b32 v7, 15, v7
    v_and_b32 v12, 7, v4
    v_lshl_add_u32 v{VST}, v12, 4, v7
    v_mul_u32_u24 v7, 272, v5
    v_lshl_add_u32 v7, v6, 4, v7
    v_add_u32 v{VPR}, {PC}, v7
    s_lshl_b32 s41, s56, 5
    s_add_u32 s41, s41, s57
    s_lshl_b32 s41, s41, 7                  ; (q*32+idx)*128
    s_lshl_b32 s42, s57, 1
    s_lshl_b32 s43, s56, 8
    s_add_u32 s42, s42, s43                 ; m base
    v_mov_b32 v{ONE}, 0x3f803f80
    v_mov_b32 v{ONE+1}, 0x3f803f80
    v_mov_b32 v{ONE+2}, 0x3f803f80
    v_mov_b32 v{ONE+3}, 0x3f803f80
    v_lshrrev_b32 v4, 4, v2                 ; g
    v_bfe_u32 v5, v2, 2, 2                  ; r
    v_lshl_add_u32 v5, v4, 3, v5
    v_mul_u32_u24 v5, 448, v5
    v_and_b32 v6, 3, v2
    v_lshl_add_u32 v5, v6, 3, v5
    v_add_u32 v5, 16384, v5
    v_and_b32 v6, 1, v4
    s_lshl_b32 s43, s60, 2
    """)
    for tt in range(4):
        a(f"""
        s_add_u32 s44, s43, {tt}
        s_min_u32 s44, s44, 13
        v_xor_b32 v7, s44, v6
        v_lshl_add_u32 v{180+tt}, v7, 5, v5
        s_lshl_b32 s44, s44, 6
        s_add_u32 s44, s44, {CSL}
        v_lshl_add_u32 v{184+tt}, v4, 4, s44
        """)
    def colsum(k):
        L = a.newlabel(name + "_cs")
        buf = (k % NBUF) * STAGE
        a(f"s_cmp_lg_u32 s66, {k}\ns_cbranch_scc1 {L}")
        for tt in range(4):
            a(f"v_add_u32 v{4+tt}, {buf}, v{180+tt}")
        for tt in range(4):
            for kk in range(2):
                for h in range(2):
                    d = CSF + tt * 8 + kk * 4 + 2 * h
                    a(f"ds_read_b64_tr_b16 {P2(d)}, v{4+tt} offset:{(32*kk+4*h)*448}")
        a("s_waitcnt lgkmcnt(0)")
        for kk in range(2):
            for tt in range(4):
                c = "0" if kk == 0 else Q4(CSD + 4 * tt)
                a(f"v_mfma_f32_16x16x32_bf16 {Q4(CSD+4*tt)}, {Q4(CSF+tt*8+kk*4)}, {Q4(ONE)}, {c}")
        a.label(L)
    WROW = 3088
    a(f"""
    s_lshl_b32 s43, s60, 6
    s_add_u32 s42, s42, s43
    s_mul_i32 s42, s42, 1026
    """)
    def w_dma():
        a(f"""
        s_mul_i32 s43, s60, {2*WROW}
        s_add_u32 m0, s43, {SP}
        s_nop 0
        """)
        for arr, srd_ in enumerate((sWR, sWI)):
            for i in range(3):
                vm.op(f"buffer_load_dwordx4 v3, {R(srd_)}, s42 offen offset:{i*1024} {opt.get('wpol','nt')} lds", "WD")
            a("s_mov_b64 exec, 3")
            vm.op(f"buffer_load_dword v14, {R(srd_)}, s42 offen offset:3072 {opt.get('wpol','nt')} lds", "WD")
            a("s_mov_b64 exec, -1")
            if arr == 0: a(f"s_add_u32 m0, m0, {WROW}\ns_nop 0")
        L = a.newlabel(name + "_wf")
        a(f"""
        s_cmp_lg_u32 s40, 1023
        s_cbranch_scc1 {L}
        s_waitcnt vmcnt(0)
        s_mov_b32 m0, {SP + 6*WROW + 2052}
        s_nop 0
        """)
        for arr, srd_ in enumerate((sWR, sWI)):
            for i in range(4):
                a(f"buffer_load_dword v14, {R(srd_)}, 0 offen offset:{i*256} lds")
            a("s_mov_b64 exec, 1")
            a(f"buffer_load_dword v14, {R(srd_)}, 0 offen offset:1024 lds")
            a("s_mov_b64 exec, -1")
            if arr == 0: a(f"s_add_u32 m0, m0, {WROW}\ns_nop 0")
        a("s_waitcnt vmcnt(0)")
        a.label(L)
    def w_gather(hf):
        for ab in range(2):
            e = 2 * hf + ab
            for i in range(4):
                row = ab if hf == 0 else 2 - ab
                si = i if hf == 0 else 3 - i
                a(f"ds_read_u16 v{192+4*e+i}, v{VW0+hf} offset:{si*2*WROW + row*1026}")
                a(f"ds_read_u16 v{208+4*e+i}, v{VW0+hf} offset:{si*2*WROW + WROW + row*1026}")
        a("s_mov_b32 s44, 0x80000000")
        for ab in range(2):
            e = 2 * hf + ab
            a(f"s_waitcnt lgkmcnt({0 if (stamp == 3 or ab) else 8})")
            for i in range(4):
                a(f"v_lshl_or_b32 v{192+4*e+i}, v{208+4*e+i}, 16, v{192+4*e+i}")
                if hf: a(f"v_xor_b32 v{192+4*e+i}, s44, v{192+4*e+i}")
            if hf == 0:
                a(f"s_add_u32 s43, s41, {WT_OFF + (ab*64)*32768}")
            else:
                a(f"s_sub_u32 s43, {WT_OFF + (ab*64+32)*32768 + 255*128}, s41")
            vm.op(f"buffer_store_dwordx4 {Q4(192+4*e)}, v{VST}, {R(sWS)}, s43 offen sc1", "WT")
    def tab_dma(base, n, tag):
        a(f"""
        s_lshr_b32 s43, s2, 7                   ; ab
        s_mul_i32 s43, s43, 40960
        s_mul_i32 s44, s60, {n*1024}
        s_add_u32 s43, s43, s44
        s_add_u32 s43, s43, {base}
        s_add_u32 m0, s44, {SP}
        s_nop 0
        """)
        for i in range(n):
            if i == 4:
                a("s_add_u32 m0, m0, 4096\ns_add_u32 s43, s43, 4096")
            vm.op(f"buffer_load_dwordx4 v3, {R(sTAB)}, s43 offen offset:{(i%4)*1024} lds", tag)
    def tab_read(dst, nq, q0=0):
        a(f"v_add_u32 v4, {SP}, v3")
        for qd in range(q0, nq):
            a(f"ds_read_b128 {Q4(dst+4*qd)}, v4 offset:{qd*1024}")
            if qd % 12 == 11: a("s_waitcnt lgkmcnt(0)")
        a("s_waitcnt lgkmcnt(0)")
    def poll_issue():
        L = a.newlabel(name + "_pi")
        a(f"""
        s_cmp_lg_u32 s60, 0
        s_cbranch_scc1 {L}
        v_lshlrev_b32 v12, 6, v2
        s_mov_b64 exec, 15
        buffer_load_dword v15, v12, {R(sDBG)}, 0 offen sc1
        s_mov_b64 exec, -1
        """)
        a.label(L)
        vm.q.append("INV")
    def poll_check():
        L = a.newlabel(name + "_pl"); Lok = a.newlabel(name + "_pk"); Ls = a.newlabel(name + "_ps")
        a(f"s_cmp_lg_u32 s60, 0\ns_cbranch_scc1 {Ls}")
        vm.wait("INV")
        a.label(L)
        a(f"""
        v_readlane_b32 s43, v15, 0
        v_readlane_b32 s44, v15, 1
        v_readlane_b32 s45, v15, 2
        v_readlane_b32 s46, v15, 3
        s_add_u32 s43, s43, s44
        s_add_u32 s45, s45, s46
        s_add_u32 s43, s43, s45
        s_cmp_eq_u32 s43, 256
        s_cbranch_scc1 {Lok}
        s_sleep 4
        s_mov_b64 exec, 15
        buffer_load_dword v15, v12, {R(sDBG)}, 0 offen sc1
        s_mov_b64 exec, -1
        s_waitcnt vmcnt(0)
        s_branch {L}
        """)
        a.label(Lok)
        a.label(Ls)
    def pw_dma(off, lds, tag):
        a(f"""
        v_lshrrev_b32 v4, 2, v2
        v_lshlrev_b32 v4, 7, v4
        v_and_b32 v5, 3, v2
        v_lshl_add_u32 v4, v5, 4, v4
        s_lshr_b32 s43, s2, 1
        s_lshl_b32 s43, s43, 15
        s_and_b32 s44, s2, 1
        s_lshl_b32 s44, s44, 6
        s_add_u32 s43, s43, s44
        s_lshl_b32 s44, s60, 13
        s_add_u32 s43, s43, s44
        s_add_u32 s43, s43, {off}
        s_add_u32 m0, s62, {lds}
        s_nop 0
        """)
        for i in range(4):
            vm.op(f"buffer_load_dwordx4 v4, {R(sWS)}, s43 offen sc1 lds", tag)
            if i < 3: a("s_add_u32 m0, m0, 1024\ns_add_u32 s43, s43, 2048")
    def pw_read(dst, lds):
        a(f"""
        s_lshl_b32 s43, s60, 4
        s_add_u32 s43, s43, {lds}
        v_lshl_add_u32 v4, v2, 6, s43
        """)
        for j in range(4):
            a(f"ds_read_b128 {Q4(dst+4*j)}, v4 offset:{j*4096}")
        a("s_waitcnt lgkmcnt(0)")
    M1, TWF, F, TWI, M1T, Dr, Di, IN, WC = 32, 64, 96, 128, 160, 192, 208, 224, 240
    a("v_lshlrev_b32 v14, 2, v2")
    if stamp == 2: S.st(2)
    issue(1)
    if stamp == 2: S.st(3)
    for k in range(16):
        extra = {3: ["WD"], 7: ["T1"], 11: ["T2"]}.get(k, []) + (["CS", "WT", "PS"] if k == PUBK else [])
        vm.wait(f"D{k}", *extra)
        a("s_waitcnt lgkmcnt(0)")
        a("s_barrier")
        if stamp == 3: a(f"s_memrealtime s[{70+2*k}:{71+2*k}]")
        if k == 11: poll_issue()
        if k == 12: poll_check()
        if k + 2 < 16: issue(k + 2)
        if k == 13:
            a(f"""
            v_lshrrev_b32 v4, 1, v2
            v_lshlrev_b32 v4, 10, v4
            v_and_b32 v5, 1, v2
            v_lshl_add_u32 v4, v5, 2, v4
            s_and_b32 s43, s58, 7
            s_lshl_b32 s43, s43, 7
            s_lshr_b32 s44, s58, 3
            s_lshl_b32 s44, s44, 5
            s_add_u32 s43, s43, s44
            s_lshl_b32 s44, s60, 3
            s_add_u32 s43, s43, s44
            s_add_u32 s43, s43, {ST_OFF}
            s_lshl_b32 s44, s60, 8
            s_add_u32 m0, s44, {EP}
            s_nop 0
            """)
            vm.op(f"buffer_load_dword v4, {R(sWS)}, s43 offen sc1 lds", "SL")
            a(f"""
            s_mul_i32 s43, s59, {16*896}
            s_mul_i32 s44, s60, 224
            s_add_u32 s43, s43, s44
            s_add_u32 s43, s43, {CS_OFF}
            v_and_b32 v4, 15, v2
            v_min_u32 v4, 13, v4
            v_lshlrev_b32 v15, 4, v4
            v_lshrrev_b32 v5, 4, v2
            v_mul_u32_u24 v5, {4*896}, v5
            v_add_u32 v4, v15, v5
            """)
            for i in range(4):
                vm.op(f"buffer_load_dwordx4 {Q4(192+4*i)}, v4, {R(sWS)}, s43 offen offset:{i*896} sc1", "CL")
            pw_dma(P_OFF, SP, "PL")
        if k == 0:
            for e in range(4):
                a(f"ds_read_b128 {Q4(IN+4*e)}, v{VPR} offset:{e*16*272}")
            a(f"v_add_u32 v4, {STL}, v3")
            a(f"ds_read_b128 {Q4(WC)}, v4")
            a(f"s_add_u32 s43, s41, {P_OFF}")
            a(f"s_waitcnt lgkmcnt(0)")
            for e in range(4):
                vm.op(f"buffer_store_dwordx4 {Q4(IN+4*e)}, v{VST}, {R(sWS)}, s43 offen sc1", "PS")
                if e < 3: a(f"s_add_u32 s43, s43, {32*32768}")
            L = a.newlabel(name + "_st")
            a(f"""
            s_cmp_lg_u32 s60, 1
            s_cbranch_scc1 {L}
            s_lshl_b32 s43, s2, 7
            s_add_u32 s43, s43, {ST_OFF}
            s_mov_b64 exec, 0xff
            buffer_store_dwordx4 {Q4(WC)}, v3, {R(sWS)}, s43 offen sc1
            s_mov_b64 exec, -1
            """)
            a.label(L)
        if k < NCS: colsum(k)
        if k == 1: w_dma()
        if k == NCS:
            a("s_mov_b32 exec_lo, 0x00010001\ns_mov_b32 exec_hi, 0x00010001")
            for tt in range(4):
                a(f"ds_write_b128 v{184+tt}, {Q4(CSD+4*tt)}")
            a("s_mov_b64 exec, -1")
        if k == 10:
            a(f"""
            v_mov_b32 v8, -1
            v_mov_b32 v9, -1
            v_mov_b32 v10, -1
            v_mov_b32 v11, -1
            s_lshl_b32 s43, s40, 12
            s_add_u32 s43, s43, {EX_OFF}
            """)
            for i in range(4):
                vm.op(f"buffer_store_dwordx4 v[8:11], v3, {R(sWS)}, s43 offen offset:{i*1024}", "EX")
        if k == 3: w_gather(0)
        if k == 4: w_gather(1)
        if k == 5: tab_dma(T.SETS["M1_0"], 6, "T1")
        if k == 7: tab_read(M1, 12)
        if k == 8: tab_read(M1, 24, 12)
        if k == 9: tab_dma(T.SETS["TWI_0"], 4, "T2")
        if k == 11: tab_read(TWI, 16)
        if k == NCS + 1:
            L = a.newlabel(name + "_cw")
            a(f"""
            s_cmp_lg_u32 s60, 2
            s_cbranch_scc1 {L}
            v_add_u32 v4, {CSL}, v3
            ds_read_b128 {Q4(WC)}, v4
            s_lshl_b32 s43, s59, 4
            s_add_u32 s43, s43, s67
            s_mul_i32 s43, s43, 896
            s_add_u32 s43, s43, {CS_OFF}
            s_mov_b32 exec_hi, 0x00ffffff
            s_waitcnt lgkmcnt(0)
            buffer_store_dwordx4 {Q4(WC)}, v3, {R(sWS)}, s43 offen sc1
            s_mov_b32 exec_hi, -1
            """)
            a.label(L)
            vm.q.append("CS")
        if k == 14:
            pw_dma(WT_OFF, STAGE, "WL")
            a(f"""
            s_mul_i32 s43, s2, 28672
            s_mul_i32 s44, s60, 7168
            s_add_u32 s43, s43, s44
            v_lshlrev_b32 v4, 7, v2
            s_mov_b32 exec_hi, 0x00ffffff
            """)
            vm.op(f"buffer_load_dword v13, v4, {R(sW2)}, s43 offen", "PF")
            a("s_mov_b32 exec_hi, -1")
        if k == 15:
            vm.wait("CL", "SL")
            for x, y in ((192, 196), (194, 198), (200, 204), (202, 206), (192, 200), (194, 202)):
                a(f"v_pk_add_f32 {P2(x)}, {P2(x)}, {P2(y)}")
            for sw in ("v_permlane32_swap_b32", "v_permlane16_swap_b32"):
                for i in range(4): a(f"v_mov_b32 v{196+i}, v{192+i}")
                a("s_nop 0")
                for i in range(4): a(f"{sw} v{192+i}, v{196+i}")
                a(f"v_pk_add_f32 v[192:193], v[192:193], v[196:197]")
                a(f"v_pk_add_f32 v[194:195], v[194:195], v[198:199]")
            a(f"""
            s_mul_i32 s43, s60, 224
            s_add_u32 s43, s43, {EP+1024}
            v_add_u32 v4, s43, v15
            ds_write_b128 v4, v[192:195]
            """)
            vm.wait("PL")
            a("s_waitcnt lgkmcnt(0)")
            a("s_barrier")
            pw_read(IN, SP)
    if stamp == 2: S.st(4)
    a(f"""
    s_and_b32 s43, s40, 15                  ; k1
    s_bfe_u32 s44, s40, 0x50004             ; k2
    s_and_b32 s45, s43, 1
    s_lshl_b32 s45, s45, 8
    s_lshr_b32 s43, s43, 1
    s_lshl_b32 s44, s44, 3
    s_add_u32 s43, s43, s44
    s_add_u32 s43, s43, s45                 ; cidx
    s_bfe_u32 s44, s43, 0x10002
    s_lshl_b32 s44, s44, 4
    s_lshl_b32 s43, s43, 7
    s_lshr_b32 s45, s40, 9
    s_lshl_b32 s45, s45, 16
    s_add_u32 s43, s43, s45
    s_add_u32 s43, s43, {Z_OFF}
    s_add_u32 s46, s43, s44
    s_xor_b32 s44, s44, 16
    s_add_u32 s47, s43, s44
    v_and_b32 v4, 31, v2
    v_lshlrev_b32 v4, 17, v4
    v_lshrrev_b32 v5, 5, v2
    v_lshl_add_u32 v12, v5, 5, v4
    """)
    mm(a, Dr, IN, M1); mm(a, Di, IN, M1 + 16)
    a("s_nop 11")
    twiddle_pack(a, Dr, Di, TWF, TWF + 16, IN, 4)
    a("s_nop 1")
    mm(a, Dr, F, IN); mm(a, Di, F + 16, IN)
    vm.wait("WL")
    a(f"""
    v_mov_b32 v4, {HC}
    v_mov_b32 v5, 1
    s_mov_b64 exec, 1
    ds_add_u32 v4, v5
    s_mov_b64 exec, -1
    """)
    a.label(name + "_hs")
    a(f"""
    ds_read_b32 v5, v4
    s_waitcnt lgkmcnt(0)
    v_readfirstlane_b32 s43, v5
    s_cmp_lt_u32 s43, 4
    s_cbranch_scc1 {name}_hs
    """)
    pw_read(WC, STAGE)
    for r in range(16):
        a(f"v_lshlrev_b32 v{32+r}, 16, v{WC+r}")
        a(f"v_and_b32 v{48+r}, 0xffff0000, v{WC+r}")
    twiddle_pack(a, Di, Dr, 32, 48, IN, 4)
    a("s_nop 1")
    mm(a, Dr, IN, F); mm(a, Di, IN, F + 16)
    a("s_nop 11")
    twiddle_pack(a, Dr, Di, TWI, TWI + 16, IN, 4)
    a("s_nop 1")
    mm(a, Dr, IN, M1T); mm(a, Di, IN, M1T + 16)
    a("s_nop 7")
    for r in range(8): a(f"v_cvt_pk_bf16_f32 v{40+r}, v{Dr+2*r}, v{Dr+2*r+1}")
    a("s_nop 3")
    for r in range(8): a(f"v_cvt_pk_bf16_f32 v{32+r}, v{Di+2*r}, v{Di+2*r+1}")
    a(f"""
    buffer_store_dwordx4 v[32:35], v12, {R(sWS)}, s46 offen
    buffer_store_dwordx4 v[36:39], v12, {R(sWS)}, s47 offen
    buffer_store_dwordx4 v[40:43], v12, {R(sWS)}, s46 offen offset:64
    buffer_store_dwordx4 v[44:47], v12, {R(sWS)}, s47 offen offset:64
    """)
    if stamp == 2:
        S.st(5); a("s_waitcnt vmcnt(0)"); S.st(6); S.out(7)
    if stamp == 3: S.out(8)
    a("s_endpgm")
    a.label(L_comp)
    a(f"""
    s_lshl_b32 s60, s56, 2
    s_add_u32 s60, s60, s3                  ; n1
    s_lshl_b32 s60, s60, 5
    s_add_u32 s60, s60, s57                 ; n
    s_lshl_b32 s61, s60, 11
    s_add_u32 s62, s61, {1024*2048}
    s_lshl_b32 s63, s3, 12
    s_add_u32 s63, s63, {XB}
    s_mul_i32 s64, s3, 7168
    s_add_u32 m0, s64, {TB}
    s_nop 0
    """)
    for i in range(7):
        if i == 4: a("s_add_u32 m0, m0, 4096\ns_add_u32 s64, s64, 4096")
        a(f"buffer_load_dwordx4 v3, {R(sTAB)}, s64 offen offset:{(i%4)*1024} lds")
    a("s_waitcnt lgkmcnt(0)")
    srd(a, sX, 40, 41, XN_BYTES)
    srd(a, sWR, 42, 43, 2048 * 513 * 2)
    srd(a, sWI, 44, 45, 2048 * 513 * 2)
    a(f"""
    s_mov_b32 m0, s63
    s_nop 0
    buffer_load_dwordx4 v3, {R(sX)}, s61 offen lds
    buffer_load_dwordx4 v3, {R(sX)}, s61 offen offset:1024 lds
    s_add_u32 m0, m0, 2048
    s_nop 0
    buffer_load_dwordx4 v3, {R(sX)}, s62 offen lds
    buffer_load_dwordx4 v3, {R(sX)}, s62 offen offset:1024 lds
    s_lshl_b32 s42, s57, 1
    s_lshl_b32 s43, s56, 8
    s_add_u32 s42, s42, s43
    s_lshl_b32 s43, s3, 6
    s_add_u32 s42, s42, s43
    s_mul_i32 s42, s42, 1026
    v_and_b32 v4, 31, v2
    v_min_u32 v4, 24, v4
    v_lshlrev_b32 v4, 7, v4
    s_lshr_b32 s43, s2, 7
    s_mul_i32 s43, s43, 40960
    s_bfe_u32 s44, s2, 0x40003
    s_lshl_b32 s44, s44, 2
    s_add_u32 s44, s44, s3
    s_mul_i32 s44, s44, 640
    s_add_u32 s43, s43, s44
    s_add_u32 s43, s43, {T.SETS["M1_0"]}
    s_mov_b64 exec, 31
    buffer_load_dword v254, v4, {R(sTAB)}, s43 offen
    s_mov_b32 exec_lo, -1
    {f"buffer_load_dword v254, v4, {R(sWR)}, s42 offen" if opt.get("wtouch") else ""}
    {f"buffer_load_dword v254, v4, {R(sWI)}, s42 offen" if opt.get("wtouch") else ""}
    s_mov_b64 exec, -1
    s_barrier
    """)
    srd(a, sDBG, 52, 53, 256)
    srd(a, sWS, 54, 55, WS_SRD_BYTES)
    srd(a, sB1, 50, 51, 3584 * 2)
    a(f"""
    s_lshl_b32 s66, s2, 2
    s_add_u32 s66, s66, s3
    s_lshr_b32 s67, s66, 7
    s_and_b32 s68, s66, 3
    s_lshl_b32 s67, s67, 2
    s_add_u32 s67, s67, s68
    s_lshl_b32 s67, s67, 4                  ; d base
    s_bfe_u32 s68, s66, 0x50002
    s_lshl_b32 s68, s68, 4
    v_and_b32 v4, 15, v2
    v_add_u32 v4, s67, v4                   ; d
    v_lshrrev_b32 v5, 4, v2
    v_lshl_add_u32 v5, v5, 2, s68
    s_mov_b32 s69, 0x3a800000
    """)
    for jj in range(4):
        a(f"""
        v_add_u32 v6, {jj}, v5                  ; cidx
        v_bfe_u32 v7, v6, 3, 5                  ; k2
        v_and_b32 v8, 7, v6
        v_lshrrev_b32 v9, 8, v6
        v_lshl_add_u32 v8, v8, 1, v9            ; k1
        v_and_b32 v9, 16, v7
        v_or_b32 v9, v9, v8
        v_cmp_eq_u32 vcc, 0, v9
        v_lshl_add_u32 v9, v7, 5, v8
        v_add_u32 v7, 16, v9
        v_cndmask_b32 v9, v9, v7, vcc           ; k
        v_mul_u32_u24 v7, v9, v4
        v_and_b32 v7, 1023, v7
        v_cvt_f32_u32 v7, v7
        v_mul_f32 v7, s69, v7
        v_cmp_eq_u32 vcc, 512, v9
        v_cos_f32 v8, v7
        v_sin_f32 v7, v7
        v_mul_f32 v9, 0.5, v8
        v_cndmask_b32 v8, v8, v9, vcc
        v_cvt_pk_bf16_f32 v{232+jj}, v8, -v7
        """)
    ACC, FX, FY = 16, 128, 172
    vA0, vA1, vB0, vB1, vB2 = 216, 217, 218, 219, 220
    cA0, cA1, cB0, cB1, cB2 = 221, 222, 223, 224, 225
    BIAS = 228
    a(f"""
    s_lshr_b32 s40, s3, 1                   ; wm
    s_and_b32 s41, s3, 1                    ; wn
    v_and_b32 v12, 15, v2                   ; i
    v_lshrrev_b32 v13, 4, v2                ; g
    s_mul_i32 s43, s59, 448
    s_lshl_b32 s44, s41, 8
    s_add_u32 s44, s44, s43
    s_lshl_b32 s45, s41, 5
    s_add_u32 s45, s45, s43
    s_add_u32 s45, s45, 192
    """)
    a(f"""
    v_lshrrev_b32 v6, 1, v12
    v_xor_b32 v6, v6, v13
    s_lshl_b32 s46, s40, 13
    v_lshlrev_b32 v7, 7, v12
    v_add_u32 v7, s46, v7
    v_lshl_add_u32 v{vA0}, v6, 4, v7
    v_xor_b32 v6, 4, v6
    v_lshl_add_u32 v{vA1}, v6, 4, v7
    v_lshrrev_b32 v6, 2, v12
    v_lshl_add_u32 v6, v13, 3, v6
    v_mul_u32_u24 v6, 448, v6
    v_and_b32 v7, 3, v2
    v_lshl_add_u32 v6, v7, 3, v6
    v_add_u32 v6, 16384, v6
    v_and_b32 v7, 1, v13
    v_lshlrev_b32 v7, 5, v7
    s_lshl_b32 s46, s41, 8
    v_add_u32 v8, s46, v6
    v_add_u32 v{vB0}, v8, v7
    v_sub_u32 v{vB1}, v8, v7
    s_add_u32 s46, s41, 6
    v_and_b32 v7, 1, v13
    v_xor_b32 v7, s46, v7
    v_lshl_add_u32 v{vB2}, v7, 5, v6
    v_lshrrev_b32 v5, 5, v2
    v_bfe_u32 v6, v2, 2, 2
    v_lshl_add_u32 v5, v5, 3, v6
    v_lshlrev_b32 v5, 6, v5
    v_bfe_u32 v6, v2, 4, 1
    v_lshl_add_u32 v5, v6, 5, v5
    v_and_b32 v6, 3, v2
    v_lshl_add_u32 v5, v6, 3, v5
    v_add_u32 v5, s63, v5
    v_add_u32 v14, {TB}, v3
    v_and_b32 v6, 31, v2
    v_mul_u32_u24 v6, 272, v6
    v_lshrrev_b32 v7, 5, v2
    v_lshl_add_u32 v6, v7, 6, v6
    s_lshl_b32 s46, s3, 2
    s_add_u32 s46, s46, {PC}
    v_add_u32 v15, s46, v6
    s_mov_b32 s47, 0x3f803f80
    s_mov_b32 s48, 0x3a800000
    s_lshl_b32 s68, s66, 10
    s_add_u32 s68, s68, {G_OFF}
    s_lshl_b32 s69, s66, 12
    s_add_u32 s69, s69, {EX_OFF}
    v_mov_b32 v4, {HC+4}
    v_mov_b32 v6, 1
    s_waitcnt vmcnt({3 if opt.get('wtouch') else 1})
    s_mov_b64 exec, 1
    ds_add_u32 v4, v6
    s_mov_b64 exec, -1
    """)
    A1, B1, D0, D1, TWc, TWs, RF, RSP, PK, D2r, D2i = 16, 32, 40, 56, 72, 88, 104, 136, 168, 184, 200
    Sr, Si = 72, 88
    for t in range(4):
        for e in range(2):
            a(f"ds_read_b64_tr_b16 {P2(A1+4*t+2*e)}, v5 offset:{(t//2)*2048 + (16*(t%2)+4*e)*64}")
    a.label(name + "_cs")
    a(f"""
    ds_read_b32 v6, v4
    s_waitcnt lgkmcnt(0)
    v_readfirstlane_b32 s64, v6
    s_cmp_lt_u32 s64, 4
    s_cbranch_scc1 {name}_cs
    """)
    a(f"ds_read_b128 {Q4(B1)}, v14 offset:{T.SETS['RB1']}")
    a(f"ds_read_b128 {Q4(B1+4)}, v14 offset:{T.SETS['RB1']+1024}")
    a("s_waitcnt lgkmcnt(0)")
    if stamp == 1: S.st(1)
    mm(a, D0, A1, B1, 2); mm(a, D1, A1 + 8, B1, 2)
    for qd in range(8): a(f"ds_read_b128 {Q4(TWc+4*qd)}, v14 offset:{T.SETS['RTW']+qd*1024}")
    for qd in range(7): a(f"ds_read_b128 {Q4(RSP+4*qd)}, v14 offset:{T.SETS['RSP']+qd*1024}")
    for w in range(8):
        for rho in range(2):
            x = A1 + 8 * rho + w
            a(f"v_dot2_f32_bf16 v{4+rho}, v{x}, s47, {'0' if w == 0 else 'v%d' % (4+rho)}")
        for rho in range(2):
            x = A1 + 8 * rho + w
            a(f"v_dot2_f32_bf16 v{6+rho}, v{x}, v{x}, {'0' if w == 0 else 'v%d' % (6+rho)}")
    a("s_nop 2")
    for sh, m in (("row_ror:8", "0xf"), ("row_ror:4", "0xf"), ("row_ror:2", "0xf"), ("row_ror:1", "0xf"), ("row_bcast:15", "0xa"), ("row_bcast:31", "0xc")):
        for r in range(4, 8):
            a(f"v_add_f32_dpp v{r}, v{r}, v{r} {sh} row_mask:{m} bank_mask:0xf")
    for r in range(4):
        a(f"v_readlane_b32 s{64+r}, v{4+r}, 63")
    a(f"""
    v_mov_b32 v8, s48
    s_nop 0
    v_mul_f32 v4, s64, v8                   ; mean0
    v_mul_f32 v5, s65, v8
    v_mul_f32 v6, s66, v8
    v_mul_f32 v7, s67, v8
    v_fma_f32 v6, -v4, v4, v6               ; var
    v_fma_f32 v7, -v5, v5, v7
    v_max_f32 v6, 0, v6
    v_max_f32 v7, 0, v7
    v_cvt_pk_bf16_f32 v6, v6, v7
    v_and_b32 v7, 0xffff0000, v6
    v_lshlrev_b32 v6, 16, v6
    v_add_f32 v6, 0x3727c5ac, v6
    v_add_f32 v7, 0x3727c5ac, v7
    v_cvt_pk_bf16_f32 v6, v6, v7
    v_and_b32 v7, 0xffff0000, v6
    v_lshlrev_b32 v6, 16, v6
    v_sqrt_f32 v6, v6
    v_sqrt_f32 v7, v7
    v_and_b32 v8, 16, v2
    v_cmp_eq_u32 vcc, 0, v8
    v_cvt_pk_bf16_f32 v6, v6, v7
    v_and_b32 v7, 0xffff0000, v6
    v_cndmask_b32 v8, v5, v4, vcc
    v_cmp_eq_u32 vcc, 0, v12
    v_lshlrev_b32 v6, 16, v6
    v_mul_f32 v8, 0x42000000, v8
    v_rcp_f32 v10, v6
    v_rcp_f32 v11, v7
    v_cndmask_b32 v8, 0, v8, vcc
    v_cvt_pk_bf16_f32 v4, v4, v5
    v_and_b32 v244, 0xffff0000, v4
    v_lshlrev_b32 v242, 16, v4
    v_mov_b32 v243, v10
    v_mov_b32 v245, v11
    s_lshl_b32 s64, s3, 3
    s_add_u32 s64, s64, {STL}
    v_mov_b32 v4, s64
    ds_write_b64 v4, v[242:243]
    ds_write_b64 v4, v[244:245] offset:32
    """)
    if stamp == 1: S.st(2)
    a("s_waitcnt lgkmcnt(0)")
    a(f"ds_read_b128 {Q4(RSP+28)}, v14 offset:{T.SETS['RSP']+7*1024}")
    for qd in range(8): a(f"ds_read_b128 {Q4(RF+4*qd)}, v14 offset:{T.SETS['RF']+qd*1024}")
    for r in range(16): a(f"v_permlane16_swap_b32 v{D0+r}, v{D1+r}")
    for r in range(0, 16, 2):
        a(f"v_pk_add_f32 {P2(D0+r)}, {P2(D0+r)}, v[8:9] op_sel_hi:[1,0] neg_lo:[0,1] neg_hi:[0,1]")
    twiddle_pack(a, D0, D1, TWc, TWs, PK, 246)
    a("s_waitcnt lgkmcnt(0)")
    a("s_nop 0")
    mm(a, Sr, PK, RSP); mm(a, Si, PK, RSP + 16)
    mm(a, D2r, PK, RF); mm(a, D2i, PK, RF + 16)
    a(f"""
    s_mov_b32 s46, 0
    s_nop 7
    s_mov_b32 exec_hi, 0
    v_mov_b32 v{D2r}, v{Sr}
    v_mov_b32 v{D2r+8}, v{Sr+8}
    s_nop 2
    v_mov_b32 v{D2i}, v{Si}
    v_mov_b32 v{D2i+8}, v{Si+8}
    s_mov_b32 exec_hi, -1
    """)
    for r in range(0, 8, 2):
        for D, o in ((D2r, 40), (D2i, 56)):
            a(f"v_pk_mul_f32 v[4:5], {P2(D+r)}, v[10:11] op_sel_hi:[1,0]")
            a(f"v_pk_fma_f32 {P2(o+r)}, {P2(D+8+r)}, v[10:11], v[4:5] op_sel:[0,1,0]")
            a(f"v_pk_fma_f32 {P2(o+8+r)}, {P2(D+8+r)}, v[10:11], v[4:5] op_sel:[0,1,0] neg_lo:[1,0,0] neg_hi:[1,0,0]")
        for ab in range(2):
            for rr in (r, r + 1):
                a(f"v_cvt_pk_bf16_f32 v{16+8*ab+rr}, v{40+8*ab+rr}, v{56+8*ab+rr}")
                a(f"ds_write_b32 v15, v{16+8*ab+rr} offset:{ab*32*272 + (8*(rr//4)+rr%4)*16}")
    def reads(S_, kk):
        ca = cA0 if kk == 0 else cA1
        def rb(t):
            base = cB2 if t == 6 else (cB0 if t % 2 == 0 else cB1)
            toff = 0 if t == 6 else t * 32
            return [f"ds_read_b64_tr_b16 {P2(S_+16+t*4+2*h)}, v{base} offset:{(32*kk+4*h)*448+toff}" for h in range(2)]
        def ra(mt): return [f"ds_read_b128 {Q4(S_+mt*4)}, v{ca} offset:{mt*2048}"]
        return ra(0) + rb(0) + rb(1) + ra(1) + rb(2) + rb(3) + ra(2) + rb(4) + rb(5) + ra(3) + rb(6)
    def mfmas(S_, zero=False):
        out = []
        for mt in range(4):
            for t in range(7):
                c = ACC + (mt * 7 + t) * 4
                out.append(f"v_mfma_f32_16x16x32_bf16 {Q4(c)}, {Q4(S_+16+t*4)}, {Q4(S_+mt*4)}, {'0' if zero else Q4(c)}")
        return out
    setcur = [f"v_add_u32 v{c}, s46, v{b}" for c, b in ((cA0, vA0), (cA1, vA1), (cB0, vB0), (cB1, vB1), (cB2, vB2))]
    advs = [f"s_add_u32 s46, s46, {STAGE}", f"s_cmp_eq_u32 s46, {STAGE*NBUF}", "s_cselect_b32 s46, 0, s46"]
    for s in setcur: a(s)
    a(f"""
    buffer_store_dwordx4 v[232:235], v3, {R(sWS)}, s68 offen
    """)
    a("v_lshlrev_b32 v5, 3, v13")
    for t in range(6):
        a(f"buffer_load_dwordx2 {P2(BIAS+2*t)}, v5, {R(sB1)}, s44 offen offset:{t*32}")
    a(f"buffer_load_dwordx2 {P2(BIAS+12)}, v5, {R(sB1)}, s45 offen")
    a(f"""
    v_mov_b32 v226, 1
    s_and_b32 s48, s2, {opt.get("shard", 1)}
    s_lshl_b32 s48, s48, 6
    v_mov_b32 v227, s48
    s_lshl_b32 s48, s3, 8
    s_add_u32 s48, s48, {PUBK}
    """)
    a("s_waitcnt lgkmcnt(0)")
    if stamp == 1: S.st(3)
    a("s_barrier")
    if stamp == 1: S.st(4)
    for s in reads(FX, 0): a(s)
    a("s_waitcnt lgkmcnt(0)")
    for s in interleave(mfmas(FX, True), reads(FY, 1) + advs + setcur): a(s)
    a("s_mov_b32 s47, 1")
    a("s_waitcnt lgkmcnt(0)")
    L_loop = name + "_cloop"
    a.label(L_loop)
    a("s_barrier")
    a(f"""
    s_cmp_lg_u32 s47, s48
    s_cbranch_scc1 {name}_nopub
    s_mov_b64 exec, 1
    buffer_atomic_add v226, v227, {R(sDBG)}, 0 offen sc1
    s_mov_b64 exec, -1
    """)
    a.label(name + "_nopub")
    for s in interleave(mfmas(FY), reads(FX, 0)): a(s)
    a("s_waitcnt lgkmcnt(0)")
    for s in interleave(mfmas(FX), reads(FY, 1) + advs + setcur + ["s_add_u32 s47, s47, 1", "s_cmp_lt_u32 s47, 15"]): a(s)
    a(f"""
    s_waitcnt lgkmcnt(0)
    s_cbranch_scc1 {L_loop}
    s_barrier
    """)
    for s in interleave(mfmas(FY), reads(FX, 0)): a(s)
    a("s_waitcnt lgkmcnt(0)")
    pre = [f"s_lshl_b32 s47, s40, 9", f"s_add_u32 s47, s47, {EP}", f"v_lshl_add_u32 v4, v12, 3, s47",
           f"s_lshl_b32 s47, s41, 9", f"s_add_u32 s47, s47, {EP+1024}", f"v_lshl_add_u32 v5, v13, 4, s47",
           f"s_lshl_b32 s47, s41, 6", f"s_add_u32 s47, s47, {EP+1024+384}", f"v_lshl_add_u32 v6, v13, 4, s47"]
    for s in interleave(mfmas(FX), reads(FY, 1) + pre): a(s)
    a("s_waitcnt lgkmcnt(0)")
    a("s_barrier")
    CV, STV = FX, FX + 28
    epr = [f"ds_read_b128 {Q4(CV+4*t)}, v5 offset:{t*64}" for t in range(6)] + [f"ds_read_b128 {Q4(CV+24)}, v6"]
    epr += [f"ds_read_b64 {P2(STV+2*mt)}, v4 offset:{mt*128}" for mt in range(4)]
    sc = f"""s_lshl_b32 s48, s58, 3
    s_lshl_b32 s49, s40, 2
    s_add_u32 s48, s48, s49
    s_mul_i32 s48, s48, 112
    s_mul_i32 s49, s59, 7
    s_add_u32 s48, s48, s49
    s_add_u32 s50, s48, 3
    s_lshl_b32 s50, s50, 10
    s_lshl_b32 s49, s41, 3
    s_add_u32 s50, s50, s49
    s_lshl_b32 s49, s41, 2
    s_add_u32 s48, s48, s49
    s_lshl_b32 s48, s48, 10
    s_add_u32 s48, s48, {ACT_OFF}
    s_add_u32 s50, s50, {ACT_OFF}
    v_mov_b32 v8, 0x3fb8aa3b""".split("\n")
    for s in interleave(mfmas(FY), epr + sc, start=2): a(s)
    if stamp == 1: S.st(5)
    BV = FY
    a("s_waitcnt vmcnt(0)")
    for t in range(7):
        a(f"v_lshlrev_b32 v{BV+t*4+0}, 16, v{BIAS+2*t}")
        a(f"v_and_b32 v{BV+t*4+1}, 0xffff0000, v{BIAS+2*t}")
        a(f"v_lshlrev_b32 v{BV+t*4+2}, 16, v{BIAS+2*t+1}")
        a(f"v_and_b32 v{BV+t*4+3}, 0xffff0000, v{BIAS+2*t+1}")
    a("s_waitcnt lgkmcnt(0)")
    tmp = 200; PKO = 208
    pk = 0
    for mt in range(4):
        st = STV + 2 * mt
        for p in range(4):
            n = 8 if p < 3 else 4
            c = ACC + (mt * 7 + 2 * p) * 4
            fo = 8 * p
            E = range(0, n, 2)
            for i in E: a(f"v_pk_fma_f32 {P2(c+i)}, {P2(CV+fo+i)}, {P2(st)}, {P2(c+i)} op_sel_hi:[1,0,1] neg_lo:[1,0,0] neg_hi:[1,0,0]")
            for i in E: a(f"v_pk_fma_f32 {P2(c+i)}, {P2(c+i)}, {P2(st)}, {P2(BV+fo+i)} op_sel:[0,1,0]")
            for i in E: a(f"v_pk_mul_f32 {P2(tmp+i)}, {P2(c+i)}, v[8:9] op_sel_hi:[1,0]")
            for i in range(n): a(f"v_exp_f32 v{tmp+i}, v{tmp+i}")
            for i in E: a(f"v_pk_add_f32 {P2(tmp+i)}, {P2(tmp+i)}, 1.0 op_sel_hi:[1,0]")
            for i in E: a(f"v_pk_fma_f32 {P2(tmp+i)}, {P2(tmp+i)}, {P2(tmp+i)}, 1.0 op_sel_hi:[1,1,0]")
            for i in range(n): a(f"v_rcp_f32 v{tmp+i}, v{tmp+i}")
            for i in E: a(f"v_pk_fma_f32 {P2(tmp+i)}, {P2(tmp+i)}, -2.0, 1.0 op_sel_hi:[1,0,0]")
            for i in E: a(f"v_pk_mul_f32 {P2(c+i)}, {P2(c+i)}, {P2(tmp+i)}")
            d = PKO + (pk % 2) * 4; pk += 1
            for i in E: a(f"v_cvt_pk_bf16_f32 v{d+i//2}, v{c+i}, v{c+i+1}")
            if p < 3:
                a(f"buffer_store_dwordx4 {Q4(d)}, v3, {R(sWS)}, s48 offen offset:{p*1024}")
            else:
                a(f"buffer_store_dwordx2 {P2(d)}, v3, {R(sWS)}, s50 offen")
        if mt < 3:
            a(f"s_add_u32 s48, s48, {112*1024}")
            a(f"s_add_u32 s50, s50, {112*1024}")
    if stamp == 1:
        S.st(6); S.out(7)
    a.label(L_end)
    a("s_endpgm")
    return descriptor(name, 256)
```

```python
import numpy as np
from tables import pk, f32_bits, cs, cset, twset, L, LI, H

def r_b1():
    out = np.zeros((2, 64, 4), dtype=np.uint32)
    part = LI // 16; k1 = LI % 16
    for t in range(2):
        vals = np.zeros((8, 64))
        for jj in range(8):
            d1 = 16 * t + 8 * H + jj
            c, s = cs(d1 * k1, 32)
            vals[jj] = np.where(part == 0, c, np.where(k1 == 0, 1.0 - 2 * (d1 % 2), -s))
        for i in range(4):
            out[t, :, i] = pk(vals[2 * i], vals[2 * i + 1])
    return out

def r_sp():
    out = np.zeros((2, 4, 64, 4), dtype=np.uint32)
    k2 = LI
    k = np.where(k2 < 16, 16 + 32 * k2, 32 * k2)
    from16 = (k2 < 16).astype(float); from0 = 1 - from16
    for j in range(4):
        for i in range(4):
            d2 = 8 * j + 4 * H + i
            c, s = cs(d2 * k, 1024)
            out[0, j, :, i] = pk(from0 * c, from16 * c)
            out[1, j, :, i] = pk(-from0 * s, -from16 * s)
    return out.reshape(8, 64, 4)

SETS = {}
order = []
pos = 0
def add(name, arr):
    global pos
    SETS[name] = pos
    order.append(arr.reshape(-1)); pos += arr.size * 4
F = cset(lambda ln, kk: ln * kk, 32)
add("RTW", twset(lambda ln, row: row * (ln % 16), 1024))
add("RF", F)
add("RSP", r_sp())
add("RB1", r_b1())
add("PAD", np.zeros(512, dtype=np.uint32))
for ab in range(2):
    add(f"M1_{ab}", cset(lambda ln, kk: kk * (2 * ln + ab), 64))
    add(f"TWF_{ab}", twset(lambda ln, row: row * (2 * ln + ab), 2048))
    add(f"F_{ab}", F)
    add(f"TWI_{ab}", twset(lambda ln, row: ln * (2 * row + ab), 2048, 2.0 ** -20))
    add(f"M1T_{ab}", cset(lambda ln, kk: ln * (2 * kk + ab), 64))
TABLE = np.concatenate(order)
TABLE_BYTES = TABLE.size * 4

def emit(a, sym):
    a.raw(".p2align 8")
    a.raw(f".type {sym},@object")
    a.raw(f"{sym}:")
    for i in range(0, TABLE.size, 8):
        a.raw(".long " + ",".join(("0x%x" % v) if v > 9 else str(v) for v in TABLE[i:i + 8]))
    a.raw(f".size {sym}, {TABLE_BYTES}")

def col_k(k1, k2):
    return np.where(k1 == 0, np.where(k2 < 16, 16 + 32 * k2, 32 * k2), k1 + 32 * k2)
```

```python
import sys, json
from asmlib import *
import tables2, l1, gemm2
opt = json.loads(sys.argv[2]) if len(sys.argv) > 2 else {}
ks = opt.get("kernels", ["l1", "gemm2"])
a = Asm()
hdr = open("parallel_sum__spectral_gfnet__dense_activation_mish__prompt.s.ref").read().split("\n")
for ln in hdr[:11]: a.raw(ln)
spec = {"l1": (512, l1.LDS_BYTES, l1.gen_l1), "gemm2": (512, gemm2.LDS_BYTES, gemm2.gen_gemm2)}
for k in ks:
    a.raw(f"; @launch kernel={k}_kernel grid=(256,1,1) block=({spec[k][0]},1,1) lds={spec[k][1]}")
a.raw('.amdgcn_target "amdgcn-amd-amdhsa--gfx950"')
a.raw(".text")
ds = [spec[k][2](a, k + "_kernel", opt.get(k, {})) for k in dict.fromkeys(ks)]
a.raw('.section .rodata,"a"')
for d in ds: a.raw(d)
tables2.emit(a, "fft_tab")
open(sys.argv[1], "w").write(a.text())
```

```python
from asmlib import *
from layout import *
import tables2 as T

STAGE = 45568
NBUF = 3
SP = STAGE * NBUF
LDS_BYTES = 163840
XB = 2 * STAGE
TB = XB + 16384
PC = SP
EP = SP + 17408
STL = EP + 2048
CSL = STL + 128
HC = EP + 1920
WST = STAGE
sX, sW1, sTAB, sWS, sWR, sWI, sDBG, sW2, sB1 = 4, 8, 12, 16, 20, 24, 28, 32, 36
def R(s): return f"s[{s}:{s+3}]"
def P2(x): return f"v[{x}:{x+1}]"
def Q4(x): return f"v[{x}:{x+3}]"

class VM:
    def __init__(self, a): self.a = a; self.q = []
    def op(self, s, tag): self.a(s); self.q.append(tag)
    def wait(self, *tags):
        idx = [i for i, t in enumerate(self.q) if t in tags]
        if not idx: return
        last = max(idx)
        n = sum(1 for t in self.q[last + 1:] if t not in ("CS", "INV"))
        self.a(f"s_waitcnt vmcnt({min(n, 63)})")
        self.q = self.q[last + 1:]

class Cap:
    def __init__(self, a): self.a = a; self.ch = []; self.atomic = False
    def _add(self, e):
        if self.atomic: self.ch[-1].append(e)
        else: self.ch.append([e])
    def __call__(self, s):
        for ln in s.strip("\n").split("\n"):
            ln = ln.strip()
            if ln: self._add(("i", ln))
    def op(self, s, tag): self._add(("op", s, tag))
    def mark(self, tag): self._add(("mark", tag))
    def label(self, l): self._add(("label", l))
    def newlabel(self, p): return self.a.newlabel(p)
    def begin(self): self.ch.append([]); self.atomic = True
    def end(self): self.atomic = False
    def emit(self, vm, chunk):
        for e in chunk:
            if e[0] == "i": self.a(e[1])
            elif e[0] == "op": vm.op(e[1], e[2])
            elif e[0] == "mark": vm.q.append(e[1])
            else: self.a.label(e[1])

def mm(a, D, A, B, n=4):
    for j in range(n):
        c = "0" if j == 0 else f"v[{D}:{D+15}]"
        a(f"v_mfma_f32_32x32x16_bf16 v[{D}:{D+15}], {Q4(A+4*j)}, {Q4(B+4*j)}, {c}")

def twiddle_pack(a, re, im, tc, ts, out, t):
    for r in range(0, 16, 2):
        t0 = t + (r & 2) * 2; t1 = t0 + 2
        a(f"v_pk_mul_f32 {P2(t0)}, {P2(re+r)}, {P2(tc+r)}")
        a(f"v_pk_mul_f32 {P2(t1)}, {P2(im+r)}, {P2(tc+r)}")
        a(f"v_pk_fma_f32 {P2(t0)}, {P2(im+r)}, {P2(ts+r)}, {P2(t0)}")
        a(f"v_pk_fma_f32 {P2(t1)}, {P2(re+r)}, {P2(ts+r)}, {P2(t1)} neg_lo:[1,0,0] neg_hi:[1,0,0]")
        a(f"v_cvt_pk_bf16_f32 v{out+r}, v{t0}, v{t1}")
        a(f"v_cvt_pk_bf16_f32 v{out+r+1}, v{t0+1}, v{t1+1}")

def gen_k1(a, name, opt=None):
    opt = opt or {}
    RSH = opt.get("rsh", 0)
    NCS = 2 << RSH
    PUBK = opt.get("pubk", NCS + 5)
    LATEK = opt.get("latek", 13)
    stamp = opt.get("stamp")
    S = Stamper(a, stamp, 70, 54, 55, 40, 44, STAMP_OFF, vt=(10, 11))
    kernel_begin(a, name)
    L_end = name + "_end"; L_comp = name + "_comp"
    a(f"""
    s_cmp_ge_u32 s2, 256
    s_cbranch_scc1 {L_end}
    """)
    if stamp != 3: S.st(0)
    a(f"""
    s_load_dwordx4 s[40:43], s[0:1], 0      ; x, w_r
    s_load_dwordx4 s[48:51], s[0:1], 32     ; w1, b1
    s_load_dwordx4 s[52:55], s[0:1], 64
    s_load_dwordx2 s[44:45], s[0:1], 16     ; w_i
    s_load_dwordx2 s[46:47], s[0:1], 48     ; w2
    v_lshrrev_b32 v1, 6, v0
    v_and_b32 v2, 63, v0                    ; lane
    s_and_b32 s56, s2, 7                    ; x / q
    s_lshr_b32 s57, s2, 3                   ; j / idx
    v_readfirstlane_b32 s3, v1
    s_and_b32 s58, s56, 1
    s_lshl_b32 s58, s58, 3
    s_and_b32 s59, s57, 7
    s_add_u32 s58, s58, s59                 ; tile_m
    s_lshr_b32 s59, s56, 1
    s_lshl_b32 s59, s59, 2
    s_lshr_b32 s60, s57, 3
    s_add_u32 s59, s59, s60                 ; tile_n
    v_lshlrev_b32 v3, 4, v2                 ; lane*16
    s_getpc_b64 s[60:61]
    s_add_u32 s60, s60, fft_tab@rel32@lo+4
    s_addc_u32 s61, s61, fft_tab@rel32@hi+12
    """)
    srd(a, sTAB, 60, 61, T.TABLE_BYTES)
    a(f"""
    v_mov_b32 v4, {HC}
    v_mov_b32 v6, 0
    v_mov_b32 v7, 0
    ds_write_b64 v4, v[6:7]
    s_cmp_lt_u32 s3, 4
    s_cbranch_scc1 {L_comp}
    """)
    vm = VM(a)
    VA, VB, VW0, VST, VPR = 16, 20, 28, 30, 31
    a(f"""
    s_sub_u32 s60, s3, 4                    ; lw
    s_lshl_b32 s61, s60, 8
    v_add_u32 v8, s61, v2
    s_lshl_b32 s62, s58, 18
    """)
    for ii in range(4):
        a(f"""
        v_add_u32 v4, {ii*64}, v8
        v_lshrrev_b32 v5, 3, v4
        v_and_b32 v6, 7, v4
        v_bfe_u32 v7, v4, 4, 3
        v_xor_b32 v6, v6, v7
        v_lshlrev_b32 v5, 11, v5
        v_lshl_add_u32 v5, v6, 4, v5
        v_add_u32 v{VA+ii}, s62, v5
        """)
    a(f"""
    v_cmp_lt_u32 vcc, 27, v2
    v_subrev_u32 v4, 28, v2
    s_mul_i32 s62, s59, 448
    s_mul_i32 s63, s60, {16*7168}
    s_add_u32 s62, s62, s63
    v_cndmask_b32 v4, v2, v4, vcc           ; pc
    v_mov_b32 v5, s62
    v_add_u32 v6, 7168, v5
    v_cndmask_b32 v5, v5, v6, vcc
    v_lshl_add_u32 v6, v4, 4, v5
    v_xor_b32 v4, 2, v4
    v_lshl_add_u32 v7, v4, 4, v5
    v_cmp_lt_u32 vcc, 55, v2
    v_mov_b32 v4, 0x40000000
    s_nop 0
    v_cndmask_b32 v6, v6, v4, vcc
    v_cndmask_b32 v7, v7, v4, vcc
    """)
    for ii in range(8):
        a(f"v_add_u32 v{VB+ii}, {2*ii*7168}, v{6 if ii < 4 else 7}")
    a(f"""
    s_lshl_b32 s62, s60, 12
    s_mul_i32 s63, s60, 7296
    s_add_u32 s63, s63, 16384
    s_and_b32 s64, s57, 7
    s_lshr_b32 s65, s64, {RSH}
    s_lshl_b32 s65, s65, {RSH+1}
    s_and_b32 s66, s64, {(1<<RSH)-1}
    s_lshl_b32 s66, s66, 1
    s_and_b32 s67, s56, 1
    s_add_u32 s66, s66, s67
    s_add_u32 s67, s65, s66
    s_waitcnt lgkmcnt(0)
    s_barrier
    s_setprio {opt.get("hprio", 0)}
    """)
    srd(a, sX, 40, 41, XN_BYTES)
    srd(a, sW1, 48, 49, 1024 * 3584 * 2)
    def issue(k, cap=None):
        buf = (k % NBUF) * STAGE
        a(f"""
        s_lshl_b32 s68, s65, 7
        s_mul_i32 s69, s65, {64*7168}
        s_add_u32 s65, s65, 1
        s_and_b32 s65, s65, 15
        """)
        units = [(f"s_add_u32 m0, s62, {buf+ii*1024}", f"buffer_load_dwordx4 v{VA+ii}, {R(sX)}, s68 offen lds") for ii in range(4)]
        units += [(f"s_add_u32 m0, s63, {buf+ii*896}", f"buffer_load_dwordx4 v{VB+ii}, {R(sW1)}, s69 offen lds") for ii in range(8)]
        ch = cap.ch if cap else []
        done = 0
        for u, (m, d) in enumerate(units):
            a(m); a("s_nop 0"); vm.op(d, f"D{k}")
            upto = (len(ch) * (u + 1)) // len(units)
            while done < upto:
                cap.emit(vm, ch[done]); done += 1
    issue(0)
    if stamp == 2: S.st(1)
    srd(a, sWS, 54, 55, WS_SRD_BYTES)
    srd(a, sWR, 42, 43, 2048 * 513 * 2)
    srd(a, sWI, 44, 45, 2048 * 513 * 2)
    srd(a, sDBG, 52, 53, 256)
    srd(a, sW2, 46, 47, 3584 * 1024 * 2)
    a(f"""
    s_lshl_b32 s40, s2, 2
    s_add_u32 s40, s40, s60
    """)
    CSF, CSD, ONE = 128, 160, 176
    a(f"""
    s_lshl_b32 s41, s60, 6
    v_add_u32 v4, s41, v2                   ; t
    v_lshrrev_b32 v5, 4, v4                 ; k2 (hf=0)
    v_and_b32 v6, 15, v4                    ; k1
    v_cmp_eq_u32 vcc, 0, v6
    v_lshl_add_u32 v7, v5, 5, v6
    v_add_u32 v12, 16, v7
    v_cndmask_b32 v12, v7, v12, vcc
    v_lshlrev_b32 v{VW0}, 1, v12
    v_add_u32 v{VW0}, {WST}, v{VW0}
    v_sub_u32 v7, 512, v7                   ; 1024-32(k2+16)-k1
    v_lshlrev_b32 v{VW0+1}, 1, v7
    v_add_u32 v{VW0+1}, {WST}, v{VW0+1}
    v_lshrrev_b32 v7, 3, v4
    v_lshlrev_b32 v7, 15, v7
    v_and_b32 v12, 7, v4
    v_lshl_add_u32 v{VST}, v12, 4, v7
    v_mul_u32_u24 v7, 272, v5
    v_lshl_add_u32 v7, v6, 4, v7
    v_add_u32 v{VPR}, {PC}, v7
    s_lshl_b32 s41, s56, 5
    s_add_u32 s41, s41, s57
    s_lshl_b32 s41, s41, 7                  ; (q*32+idx)*128
    s_lshl_b32 s42, s57, 1
    s_lshl_b32 s43, s56, 8
    s_add_u32 s42, s42, s43                 ; m base
    v_mov_b32 v{ONE}, 0x3f803f80
    v_mov_b32 v{ONE+1}, 0x3f803f80
    v_mov_b32 v{ONE+2}, 0x3f803f80
    v_mov_b32 v{ONE+3}, 0x3f803f80
    v_lshrrev_b32 v4, 4, v2                 ; g
    v_bfe_u32 v5, v2, 2, 2                  ; r
    v_lshl_add_u32 v5, v4, 3, v5
    v_mul_u32_u24 v5, 448, v5
    v_and_b32 v6, 3, v2
    v_lshl_add_u32 v5, v6, 3, v5
    v_add_u32 v5, 16384, v5
    v_lshrrev_b32 v6, 1, v4
    v_lshl_add_u32 v5, v6, 7, v5
    v_and_b32 v6, 1, v4
    s_lshl_b32 s43, s60, 2
    """)
    for tt in range(4):
        a(f"""
        s_add_u32 s44, s43, {tt}
        s_min_u32 s44, s44, 13
        v_xor_b32 v7, s44, v6
        v_lshl_add_u32 v{180+tt}, v7, 5, v5
        s_lshl_b32 s44, s44, 6
        s_add_u32 s44, s44, {CSL}
        v_lshl_add_u32 v{184+tt}, v4, 4, s44
        """)
    WROW = 3088
    a(f"""
    s_lshl_b32 s43, s60, 6
    s_add_u32 s42, s42, s43
    s_mul_i32 s42, s42, 1026
    """)
    sP2, sPR = 96, 98
    if opt.get("spf"):
        a(f"""
        s_mul_i32 s43, s2, 28672
        s_mul_i32 s44, s60, 7168
        s_add_u32 s43, s43, s44
        s_add_u32 s{sP2}, s{sW2}, s43
        s_addc_u32 s{sP2+1}, s{sW2+1}, 0
        s_min_u32 s43, s42, {2048*1026-3204}
        s_and_b32 s43, s43, -4
        s_add_u32 s{sPR}, s{sWR}, s43
        s_addc_u32 s{sPR+1}, s{sWR+1}, 0
        s_add_u32 s{sPR+2}, s{sWI}, s43
        s_addc_u32 s{sPR+3}, s{sWI+1}, 0
        """)
    def colsum(c, k):
        buf = (k % NBUF) * STAGE
        for part in range(3):
            L = a.newlabel(name + "_cq")
            c.begin()
            c(f"s_cmp_lg_u32 s66, {k}\ns_cbranch_scc1 {L}")
            if part < 2:
                for tt in (2 * part, 2 * part + 1):
                    c(f"v_add_u32 v4, {buf}, v{180+tt}")
                    for kk in range(2):
                        for h in range(2):
                            d = CSF + tt * 8 + kk * 4 + 2 * h
                            c(f"ds_read_b64_tr_b16 {P2(d)}, v4 offset:{(32*kk+4*h)*448+kk*256}")
            else:
                c("s_waitcnt lgkmcnt(0)")
                for kk in range(2):
                    for tt in range(4):
                        cc = "0" if kk == 0 else Q4(CSD + 4 * tt)
                        c(f"v_mfma_f32_16x16x32_bf16 {Q4(CSD+4*tt)}, {Q4(CSF+tt*8+kk*4)}, {Q4(ONE)}, {cc}")
            c.label(L)
            c.end()
    def w_dma(c):
        c(f"s_mul_i32 s47, s60, {2*WROW}")
        for arr, srd_ in enumerate((sWR, sWI)):
            c.begin()
            c(f"s_add_u32 m0, s47, {WST+arr*WROW}\ns_nop 0")
            for i in range(3):
                c.op(f"buffer_load_dwordx4 v3, {R(srd_)}, s42 offen offset:{i*1024} {opt.get('wpol','nt')} lds", "WD")
            c("s_mov_b64 exec, 3")
            c.op(f"buffer_load_dword v14, {R(srd_)}, s42 offen offset:3072 {opt.get('wpol','nt')} lds", "WD")
            c("s_mov_b64 exec, -1")
            c.end()
        L = a.newlabel(name + "_wf")
        c.begin()
        c(f"""
        s_cmp_lg_u32 s40, 1023
        s_cbranch_scc1 {L}
        s_waitcnt vmcnt(0)
        s_mov_b32 m0, {WST + 6*WROW + 2052}
        s_nop 0
        """)
        for arr, srd_ in enumerate((sWR, sWI)):
            for i in range(4):
                c(f"buffer_load_dword v14, {R(srd_)}, 0 offen offset:{i*256} lds")
            c("s_mov_b64 exec, 1")
            c(f"buffer_load_dword v14, {R(srd_)}, 0 offen offset:1024 lds")
            c("s_mov_b64 exec, -1")
            if arr == 0: c(f"s_add_u32 m0, m0, {WROW}\ns_nop 0")
        c("s_waitcnt vmcnt(0)")
        c.label(L)
        c.end()
    def w_gather(c, hf):
        for ab in range(2):
            e = 2 * hf + ab
            for i in range(4):
                row = ab if hf == 0 else 2 - ab
                si = i if hf == 0 else 3 - i
                c(f"ds_read_u16 v{192+4*e+i}, v{VW0+hf} offset:{si*2*WROW + row*1026}")
                c(f"ds_read_u16 v{208+4*e+i}, v{VW0+hf} offset:{si*2*WROW + WROW + row*1026}")
        c("s_mov_b32 s44, 0x80000000")
        for ab in range(2):
            e = 2 * hf + ab
            c(f"s_waitcnt lgkmcnt({0 if (stamp == 3 or ab) else 8})")
            for i in range(4):
                c(f"v_lshl_or_b32 v{192+4*e+i}, v{208+4*e+i}, 16, v{192+4*e+i}")
                if hf: c(f"v_xor_b32 v{192+4*e+i}, s44, v{192+4*e+i}")
            if hf == 0:
                c(f"s_add_u32 s43, s41, {WT_OFF + (ab*64)*32768}")
            else:
                c(f"s_sub_u32 s43, {WT_OFF + (ab*64+32)*32768 + 255*128}, s41")
            c.op(f"buffer_store_dwordx4 {Q4(192+4*e)}, v{VST}, {R(sWS)}, s43 offen {opt.get('ppol','')}", "WT")
    def tab_dma(c, base, n, tag):
        c(f"""
        s_lshr_b32 s43, s2, 7
        s_mul_i32 s43, s43, 40960
        s_mul_i32 s44, s60, {n*1024}
        s_add_u32 s43, s43, s44
        s_add_u32 s43, s43, {base}
        """)
        for i in range(n):
            c.begin()
            c(f"s_add_u32 m0, s44, {SP+i*1024}\ns_nop 0")
            c.op(f"buffer_load_dwordx4 v3, {R(sTAB)}, s43 offen lds", tag)
            c("s_add_u32 s43, s43, 1024")
            c.end()
    def tab_read(c, dst, nq, q0=0):
        c(f"v_add_u32 v4, {SP}, v3")
        for qd in range(q0, nq):
            c(f"ds_read_b128 {Q4(dst+4*qd)}, v4 offset:{qd*1024}")
    def poll_issue():
        L = a.newlabel(name + "_pi")
        a(f"""
        s_cmp_lg_u32 s60, 0
        s_cbranch_scc1 {L}
        v_lshlrev_b32 v12, 6, v2
        s_mov_b64 exec, 15
        buffer_load_dword v15, v12, {R(sDBG)}, 0 offen sc1
        s_mov_b64 exec, -1
        """)
        a.label(L)
        vm.q.append("INV")
    def poll_check():
        L = a.newlabel(name + "_pl"); Ls = a.newlabel(name + "_ps")
        a(f"s_cmp_lg_u32 s60, 0\ns_cbranch_scc1 {Ls}")
        a.label(L)
        a(f"""
        v_readlane_b32 s43, v15, 0
        v_readlane_b32 s44, v15, 1
        v_readlane_b32 s47, v15, 2
        v_readlane_b32 s48, v15, 3
        s_add_u32 s43, s43, s44
        s_add_u32 s47, s47, s48
        s_add_u32 s43, s43, s47
        s_cmp_eq_u32 s43, 256
        s_cbranch_scc1 {Ls}
        s_sleep 4
        s_mov_b64 exec, 15
        buffer_load_dword v15, v12, {R(sDBG)}, 0 offen sc1
        s_mov_b64 exec, -1
        s_waitcnt vmcnt(0)
        s_branch {L}
        """)
        a.label(Ls)
    def pw_addr(c):
        c(f"""
        v_lshrrev_b32 v6, 2, v2
        v_lshlrev_b32 v6, 7, v6
        v_and_b32 v5, 3, v2
        v_lshl_add_u32 v6, v5, 4, v6
        s_lshr_b32 s47, s2, 1
        s_lshl_b32 s47, s47, 15
        s_and_b32 s44, s2, 1
        s_lshl_b32 s44, s44, 6
        s_add_u32 s47, s47, s44
        s_lshl_b32 s44, s60, 13
        s_add_u32 s47, s47, s44
        """)
    def pw_dma(off, lds, tag):
        a(f"""
        s_add_u32 s43, s47, {off}
        s_add_u32 m0, s62, {lds}
        s_nop 0
        """)
        for i in range(4):
            vm.op(f"buffer_load_dwordx4 v6, {R(sWS)}, s43 offen sc1 lds", tag)
            if i < 3: a("s_add_u32 m0, m0, 1024\ns_add_u32 s43, s43, 2048")
    def pw_read(dst, lds):
        a(f"""
        s_lshl_b32 s43, s60, 4
        s_add_u32 s43, s43, {lds}
        v_lshl_add_u32 v4, v2, 6, s43
        """)
        for j in range(4):
            a(f"ds_read_b128 {Q4(dst+4*j)}, v4 offset:{j*4096}")
        a("s_waitcnt lgkmcnt(0)")
    M1, TWF, F, TWI, M1T, Dr, Di, IN, WC = 32, 64, 96, 128, 160, 192, 208, 224, 240
    a(f"""
    v_lshlrev_b32 v14, 2, v2
    v_lshrrev_b32 v7, 1, v2
    v_lshlrev_b32 v7, 13, v7
    v_and_b32 v5, 1, v2
    v_lshl_add_u32 v32, v5, 2, v7
    s_and_b32 s45, s58, 7
    s_lshl_b32 s45, s45, 10
    s_lshr_b32 s44, s58, 3
    s_lshl_b32 s44, s44, 5
    s_add_u32 s45, s45, s44
    s_lshl_b32 s44, s60, 3
    s_add_u32 s45, s45, s44
    s_add_u32 s45, s45, {ST_OFF}
    s_lshr_b32 s46, s59, 2
    s_lshl_b32 s46, s46, 11
    s_and_b32 s44, s59, 3
    s_lshl_b32 s44, s44, 16
    s_add_u32 s46, s46, s44
    s_mul_i32 s44, s60, 224
    s_add_u32 s46, s46, s44
    s_add_u32 s46, s46, {ST_OFF+128}
    v_and_b32 v4, 15, v2
    v_min_u32 v4, 13, v4
    v_lshlrev_b32 v4, 4, v4
    v_lshrrev_b32 v5, 4, v2
    v_lshl_add_u32 v33, v5, 14, v4
    s_add_u32 s44, s44, {EP+1024}
    v_add_u32 v34, s44, v4
    """)
    if stamp == 2: S.st(2)
    issue(1)
    if stamp == 2: S.st(3)
    def flush(c):
        for ch in c.ch: c.emit(vm, ch)
    for k in range(16):
        extra = {13: ["INV"]}.get(k, [])
        vm.wait(f"D{k}", *extra)
        if k == 13: poll_check()
        if k <= NCS + 1 or not opt.get("spf"): a("s_waitcnt lgkmcnt(0)")
        a("s_barrier")
        if stamp == 3: a(f"s_mem{opt.get('clk','')}time s[{70+2*k}:{71+2*k}]")
        if k == 12: poll_issue()
        c = Cap(a)
        if k < NCS: colsum(c, k)
        if k == NCS:
            c.begin()
            c("s_mov_b32 exec_lo, 0x00010001\ns_mov_b32 exec_hi, 0x00010001")
            for tt in range(4):
                c(f"ds_write_b128 v{184+tt}, {Q4(CSD+4*tt)}")
            c("s_mov_b64 exec, -1")
            c.end()
        SPF = opt.get("spf", 0)
        if SPF and 2 <= k <= 13:
            lst = []
            if SPF & 1: lst += [f"s_load_dword s51, s[{sP2}:{sP2+1}], {128*i}" for i in range(56)]
            if SPF & 2: lst = [f"s_load_dword s51, s[{sPR+2*(i&1)}:{sPR+1+2*(i&1)}], {128*(i>>1)}" for i in range(50)] + lst
            n = len(lst)
            for x in lst[(k-2)*n//12:(k-1)*n//12]: c(x)
        if k + 2 < 16: issue(k + 2, c)
        if k == LATEK:
            a(f"s_lshl_b32 s44, s60, 8\ns_add_u32 m0, s44, {EP}\ns_add_u32 s44, s46, 8192")
            vm.op(f"buffer_load_dword v32, {R(sWS)}, s45 offen sc1 lds", "SL")
            for i in range(4):
                vm.op(f"buffer_load_dwordx4 {Q4(240+4*i)}, v33, {R(sWS)}, s{46 if i < 2 else 44} offen offset:{(i&1)*1024} sc1", "CL")
        if k == 14:
            c = Cap(a); w_dma(c); flush(c)
        if k == 15:
            vm.wait("CL", "SL")
            for x, y in ((240, 244), (242, 246), (248, 252), (250, 254), (240, 248), (242, 250)):
                a(f"v_pk_add_f32 {P2(x)}, {P2(x)}, {P2(y)}")
            for sw in ("v_permlane32_swap_b32", "v_permlane16_swap_b32"):
                for i in range(4): a(f"v_mov_b32 v{244+i}, v{240+i}")
                a("s_nop 0")
                for i in range(4): a(f"{sw} v{240+i}, v{244+i}")
                a(f"v_pk_add_f32 v[240:241], v[240:241], v[244:245]")
                a(f"v_pk_add_f32 v[242:243], v[242:243], v[246:247]")
            a(f"""
            ds_write_b128 v34, v[240:243]
            s_waitcnt lgkmcnt(0)
            s_barrier
            """)
    if stamp == 2: S.st(4)
    a(f"""
    s_and_b32 s43, s57, 7
    s_mul_i32 s43, s43, 7
    s_lshr_b32 s43, s43, 1
    s_add_u32 s43, s43, s60
    s_min_u32 s43, s43, 27
    s_and_b32 s44, s2, 1
    s_mul_i32 s44, s44, 28
    s_add_u32 s43, s43, s44
    s_lshl_b32 s43, s43, 17
    s_bfe_u32 s44, s2, 0x10002
    s_lshl_b32 s44, s44, 2
    s_lshr_b32 s45, s57, 3
    s_add_u32 s44, s44, s45
    s_lshl_b32 s44, s44, 7
    s_add_u32 s43, s43, s44
    v_lshlrev_b32 v4, 11, v2
    """)
    if opt.get("vpf", 1) == 1:
        vm.op(f"buffer_load_dword v13, v4, {R(sW2)}, s43 offen", "PF")
        vm.op(f"buffer_load_dword v13, v4, {R(sW2)}, s43 offen offset:1024", "PF")
    a(f"""
    s_lshr_b32 s43, s2, 7
    s_mul_i32 s43, s43, 40960
    s_bfe_u32 s44, s2, 0x40003
    s_lshl_b32 s44, s44, 2
    s_add_u32 s44, s44, s60
    s_mul_i32 s44, s44, 640
    s_add_u32 s43, s43, s44
    s_add_u32 s43, s43, {T.SETS["M1_0"]}
    v_lshlrev_b32 v4, 7, v2
    s_mov_b64 exec, 31
    """)
    vm.op(f"buffer_load_dword v13, v4, {R(sTAB)}, s43 offen", "PF")
    a("s_mov_b64 exec, -1")
    for e in range(4):
        a(f"ds_read_b128 {Q4(IN+4*e)}, v{VPR} offset:{e*16*272}")
    a(f"""
    v_mov_b32 v8, -1
    v_mov_b32 v9, -1
    v_mov_b32 v10, -1
    v_mov_b32 v11, -1
    s_lshl_b32 s43, s40, 12
    s_add_u32 s43, s43, {EX_OFF}
    """)
    for i in range(4):
        vm.op(f"buffer_store_dwordx4 v[8:11], v3, {R(sWS)}, s43 offen offset:{i*1024} {opt.get('ppol','')}", "EX")
    a(f"s_add_u32 s43, s41, {P_OFF}")
    a(f"s_waitcnt lgkmcnt(0)")
    for e in range(4):
        vm.op(f"buffer_store_dwordx4 {Q4(IN+4*e)}, v{VST}, {R(sWS)}, s43 offen {opt.get('ppol','')}", "PS")
        if e < 3: a(f"s_add_u32 s43, s43, {32*32768}")
    vm.wait("WD")
    a(f"""
    v_mov_b32 v4, {HC}
    v_mov_b32 v5, 1
    s_mov_b64 exec, 1
    ds_add_u32 v4, v5
    s_mov_b64 exec, -1
    """)
    a.label(name + "_hs")
    a(f"""
    ds_read_b32 v5, v4
    s_waitcnt lgkmcnt(0)
    v_readfirstlane_b32 s43, v5
    s_cmp_lt_u32 s43, 4
    s_cbranch_scc1 {name}_hs
    """)
    c = Cap(a); w_gather(c, 0); w_gather(c, 1); flush(c)
    if opt.get("vpf", 1) == 2:
        a(f"""
        s_mul_i32 s43, s2, 28672
        s_mul_i32 s44, s60, 7168
        s_add_u32 s43, s43, s44
        v_lshlrev_b32 v4, 7, v2
        s_mov_b32 exec_hi, 0x00ffffff
        buffer_load_dword v13, v4, {R(sW2)}, s43 offen
        s_mov_b32 exec_hi, -1
        """)
    if stamp == 2:
        S.st(5); a("s_waitcnt vmcnt(0)"); S.st(6); S.out(7)
    if stamp == 3: S.out(8)
    a("s_endpgm")
    a.label(L_comp)
    a(f"""
    s_lshl_b32 s60, s56, 2
    s_add_u32 s60, s60, s3                  ; n1
    s_lshl_b32 s60, s60, 5
    s_add_u32 s60, s60, s57                 ; n
    s_lshl_b32 s61, s60, 11
    s_add_u32 s62, s61, {1024*2048}
    s_lshl_b32 s63, s3, 12
    s_add_u32 s63, s63, {XB}
    s_mul_i32 s64, s3, 7168
    s_add_u32 m0, s64, {TB}
    s_nop 0
    """)
    for i in range(7):
        if i == 4: a("s_add_u32 m0, m0, 4096\ns_add_u32 s64, s64, 4096")
        a(f"buffer_load_dwordx4 v3, {R(sTAB)}, s64 offen offset:{(i%4)*1024} lds")
    a("s_waitcnt lgkmcnt(0)")
    srd(a, sX, 40, 41, XN_BYTES)
    a(f"""
    s_mov_b32 m0, s63
    s_nop 0
    buffer_load_dwordx4 v3, {R(sX)}, s61 offen lds
    buffer_load_dwordx4 v3, {R(sX)}, s61 offen offset:1024 lds
    s_add_u32 m0, m0, 2048
    s_nop 0
    buffer_load_dwordx4 v3, {R(sX)}, s62 offen lds
    buffer_load_dwordx4 v3, {R(sX)}, s62 offen offset:1024 lds
    s_barrier
    """)
    srd(a, sDBG, 52, 53, 256)
    srd(a, sWS, 54, 55, WS_SRD_BYTES)
    srd(a, sB1, 50, 51, 3584 * 2)
    a(f"""
    s_lshl_b32 s66, s2, 2
    s_add_u32 s66, s66, s3
    s_lshr_b32 s67, s66, 7
    s_and_b32 s68, s66, 3
    s_lshl_b32 s67, s67, 2
    s_add_u32 s67, s67, s68
    s_lshl_b32 s67, s67, 4                  ; d base
    s_bfe_u32 s68, s66, 0x50002
    s_lshl_b32 s68, s68, 4
    v_and_b32 v4, 15, v2
    v_add_u32 v4, s67, v4                   ; d
    v_lshrrev_b32 v5, 4, v2
    v_lshl_add_u32 v5, v5, 2, s68
    s_mov_b32 s69, 0x3a800000
    """)
    for jj in range(4):
        a(f"""
        v_add_u32 v6, {jj}, v5                  ; cidx
        v_bfe_u32 v7, v6, 3, 5                  ; k2
        v_and_b32 v8, 7, v6
        v_lshrrev_b32 v9, 8, v6
        v_lshl_add_u32 v8, v8, 1, v9            ; k1
        v_and_b32 v9, 16, v7
        v_or_b32 v9, v9, v8
        v_cmp_eq_u32 vcc, 0, v9
        v_lshl_add_u32 v9, v7, 5, v8
        v_add_u32 v7, 16, v9
        v_cndmask_b32 v9, v9, v7, vcc           ; k
        v_mul_u32_u24 v7, v9, v4
        v_and_b32 v7, 1023, v7
        v_cvt_f32_u32 v7, v7
        v_mul_f32 v7, s69, v7
        v_cmp_eq_u32 vcc, 512, v9
        v_cos_f32 v8, v7
        v_sin_f32 v7, v7
        v_mul_f32 v9, 0.5, v8
        v_cndmask_b32 v8, v8, v9, vcc
        v_cvt_pk_bf16_f32 v{232+jj}, v8, -v7
        """)
    ACC, FX, FY = 16, 128, 172
    vA0, vA1, vB0, vB1, vB2 = 216, 217, 218, 219, 220
    cA0, cA1, cB0, cB1, cB2 = 221, 222, 223, 224, 225
    BIAS = 228
    a(f"""
    s_lshr_b32 s40, s3, 1                   ; wm
    s_and_b32 s41, s3, 1                    ; wn
    v_and_b32 v12, 15, v2                   ; i
    v_lshrrev_b32 v13, 4, v2                ; g
    s_mul_i32 s43, s59, 448
    s_lshl_b32 s44, s41, 8
    s_add_u32 s44, s44, s43
    s_lshl_b32 s45, s41, 5
    s_add_u32 s45, s45, s43
    s_add_u32 s45, s45, 192
    """)
    a(f"""
    v_lshrrev_b32 v6, 1, v12
    v_xor_b32 v6, v6, v13
    s_lshl_b32 s46, s40, 13
    v_lshlrev_b32 v7, 7, v12
    v_add_u32 v7, s46, v7
    v_lshl_add_u32 v{vA0}, v6, 4, v7
    v_xor_b32 v6, 4, v6
    v_lshl_add_u32 v{vA1}, v6, 4, v7
    v_lshrrev_b32 v6, 2, v12
    v_lshl_add_u32 v6, v13, 3, v6
    v_mul_u32_u24 v6, 448, v6
    v_and_b32 v7, 3, v2
    v_lshl_add_u32 v6, v7, 3, v6
    v_add_u32 v6, 16384, v6
    v_lshrrev_b32 v7, 1, v13
    v_lshl_add_u32 v6, v7, 7, v6
    v_and_b32 v7, 1, v13
    v_lshlrev_b32 v7, 5, v7
    s_lshl_b32 s46, s41, 8
    v_add_u32 v8, s46, v6
    v_add_u32 v{vB0}, v8, v7
    v_sub_u32 v{vB1}, v8, v7
    s_add_u32 s46, s41, 6
    v_and_b32 v7, 1, v13
    v_xor_b32 v7, s46, v7
    v_lshl_add_u32 v{vB2}, v7, 5, v6
    v_lshrrev_b32 v5, 5, v2
    v_bfe_u32 v6, v2, 2, 2
    v_lshl_add_u32 v5, v5, 3, v6
    v_lshlrev_b32 v5, 6, v5
    v_bfe_u32 v6, v2, 4, 1
    v_lshl_add_u32 v5, v6, 5, v5
    v_and_b32 v6, 3, v2
    v_lshl_add_u32 v5, v6, 3, v5
    v_add_u32 v5, s63, v5
    v_add_u32 v14, {TB}, v3
    v_and_b32 v6, 31, v2
    v_mul_u32_u24 v6, 272, v6
    v_lshrrev_b32 v7, 5, v2
    v_lshl_add_u32 v6, v7, 6, v6
    s_lshl_b32 s46, s3, 2
    s_add_u32 s46, s46, {PC}
    v_add_u32 v15, s46, v6
    s_mov_b32 s47, 0x3f803f80
    s_mov_b32 s48, 0x3a800000
    s_lshl_b32 s68, s66, 10
    s_add_u32 s68, s68, {G_OFF}
    s_lshl_b32 s69, s66, 12
    s_add_u32 s69, s69, {EX_OFF}
    v_mov_b32 v4, {HC+4}
    v_mov_b32 v6, 1
    s_waitcnt vmcnt(0)
    s_mov_b64 exec, 1
    ds_add_u32 v4, v6
    s_mov_b64 exec, -1
    """)
    A1, B1, D0, D1, TWc, TWs, RF, RSP, PK, D2r, D2i = 16, 32, 40, 56, 72, 88, 104, 136, 168, 184, 200
    Sr, Si = 72, 88
    for t in range(4):
        for e in range(2):
            a(f"ds_read_b64_tr_b16 {P2(A1+4*t+2*e)}, v5 offset:{(t//2)*2048 + (16*(t%2)+4*e)*64}")
    a.label(name + "_cs")
    a(f"""
    ds_read_b32 v6, v4
    s_waitcnt lgkmcnt(0)
    v_readfirstlane_b32 s64, v6
    s_cmp_lt_u32 s64, 4
    s_cbranch_scc1 {name}_cs
    """)
    a(f"ds_read_b128 {Q4(B1)}, v14 offset:{T.SETS['RB1']}")
    a(f"ds_read_b128 {Q4(B1+4)}, v14 offset:{T.SETS['RB1']+1024}")
    a("s_waitcnt lgkmcnt(0)")
    if stamp == 1: S.st(1)
    mm(a, D0, A1, B1, 2); mm(a, D1, A1 + 8, B1, 2)
    for qd in range(8): a(f"ds_read_b128 {Q4(TWc+4*qd)}, v14 offset:{T.SETS['RTW']+qd*1024}")
    for qd in range(7): a(f"ds_read_b128 {Q4(RSP+4*qd)}, v14 offset:{T.SETS['RSP']+qd*1024}")
    for w in range(8):
        for rho in range(2):
            x = A1 + 8 * rho + w
            a(f"v_dot2_f32_bf16 v{4+rho}, v{x}, s47, {'0' if w == 0 else 'v%d' % (4+rho)}")
        for rho in range(2):
            x = A1 + 8 * rho + w
            a(f"v_dot2_f32_bf16 v{6+rho}, v{x}, v{x}, {'0' if w == 0 else 'v%d' % (6+rho)}")
    a("s_nop 2")
    for sh, m in (("row_ror:8", "0xf"), ("row_ror:4", "0xf"), ("row_ror:2", "0xf"), ("row_ror:1", "0xf"), ("row_bcast:15", "0xa"), ("row_bcast:31", "0xc")):
        for r in range(4, 8):
            a(f"v_add_f32_dpp v{r}, v{r}, v{r} {sh} row_mask:{m} bank_mask:0xf")
    for r in range(4):
        a(f"v_readlane_b32 s{64+r}, v{4+r}, 63")
    a(f"""
    v_mov_b32 v8, s48
    s_nop 0
    v_mul_f32 v4, s64, v8                   ; mean0
    v_mul_f32 v5, s65, v8
    v_mul_f32 v6, s66, v8
    v_mul_f32 v7, s67, v8
    v_fma_f32 v6, -v4, v4, v6               ; var
    v_fma_f32 v7, -v5, v5, v7
    v_max_f32 v6, 0, v6
    v_max_f32 v7, 0, v7
    v_cvt_pk_bf16_f32 v6, v6, v7
    v_and_b32 v7, 0xffff0000, v6
    v_lshlrev_b32 v6, 16, v6
    v_add_f32 v6, 0x3727c5ac, v6
    v_add_f32 v7, 0x3727c5ac, v7
    v_cvt_pk_bf16_f32 v6, v6, v7
    v_and_b32 v7, 0xffff0000, v6
    v_lshlrev_b32 v6, 16, v6
    v_sqrt_f32 v6, v6
    v_sqrt_f32 v7, v7
    v_and_b32 v8, 16, v2
    v_cmp_eq_u32 vcc, 0, v8
    v_cvt_pk_bf16_f32 v6, v6, v7
    v_and_b32 v7, 0xffff0000, v6
    v_cndmask_b32 v8, v5, v4, vcc
    v_cmp_eq_u32 vcc, 0, v12
    v_lshlrev_b32 v6, 16, v6
    v_mul_f32 v8, 0x42000000, v8
    v_rcp_f32 v10, v6
    v_rcp_f32 v11, v7
    v_cndmask_b32 v8, 0, v8, vcc
    v_cvt_pk_bf16_f32 v4, v4, v5
    v_and_b32 v244, 0xffff0000, v4
    v_lshlrev_b32 v242, 16, v4
    v_mov_b32 v243, v10
    v_mov_b32 v245, v11
    s_lshl_b32 s64, s3, 3
    s_add_u32 s64, s64, {STL}
    v_mov_b32 v4, s64
    ds_write_b64 v4, v[242:243]
    ds_write_b64 v4, v[244:245] offset:32
    """)
    if stamp == 1: S.st(2)
    a("s_waitcnt lgkmcnt(0)")
    a(f"ds_read_b128 {Q4(RSP+28)}, v14 offset:{T.SETS['RSP']+7*1024}")
    for qd in range(8): a(f"ds_read_b128 {Q4(RF+4*qd)}, v14 offset:{T.SETS['RF']+qd*1024}")
    for r in range(16): a(f"v_permlane16_swap_b32 v{D0+r}, v{D1+r}")
    for r in range(0, 16, 2):
        a(f"v_pk_add_f32 {P2(D0+r)}, {P2(D0+r)}, v[8:9] op_sel_hi:[1,0] neg_lo:[0,1] neg_hi:[0,1]")
    twiddle_pack(a, D0, D1, TWc, TWs, PK, 246)
    a("s_waitcnt lgkmcnt(0)")
    a("s_nop 0")
    mm(a, Sr, PK, RSP); mm(a, Si, PK, RSP + 16)
    mm(a, D2r, PK, RF); mm(a, D2i, PK, RF + 16)
    a(f"""
    s_mov_b32 s46, 0
    s_nop 7
    s_mov_b32 exec_hi, 0
    v_mov_b32 v{D2r}, v{Sr}
    v_mov_b32 v{D2r+8}, v{Sr+8}
    s_nop 2
    v_mov_b32 v{D2i}, v{Si}
    v_mov_b32 v{D2i+8}, v{Si+8}
    s_mov_b32 exec_hi, -1
    """)
    for r in range(0, 8, 2):
        for D, o in ((D2r, 40), (D2i, 56)):
            a(f"v_pk_mul_f32 v[4:5], {P2(D+r)}, v[10:11] op_sel_hi:[1,0]")
            a(f"v_pk_fma_f32 {P2(o+r)}, {P2(D+8+r)}, v[10:11], v[4:5] op_sel:[0,1,0]")
            a(f"v_pk_fma_f32 {P2(o+8+r)}, {P2(D+8+r)}, v[10:11], v[4:5] op_sel:[0,1,0] neg_lo:[1,0,0] neg_hi:[1,0,0]")
        for ab in range(2):
            for rr in (r, r + 1):
                a(f"v_cvt_pk_bf16_f32 v{16+8*ab+rr}, v{40+8*ab+rr}, v{56+8*ab+rr}")
                a(f"ds_write_b32 v15, v{16+8*ab+rr} offset:{ab*32*272 + (8*(rr//4)+rr%4)*16}")
    def reads(S_, kk):
        ca = cA0 if kk == 0 else cA1
        def rb(t):
            base = cB2 if t == 6 else (cB0 if t % 2 == 0 else cB1)
            toff = 0 if t == 6 else t * 32
            return [f"ds_read_b64_tr_b16 {P2(S_+16+t*4+2*h)}, v{base} offset:{(32*kk+4*h)*448+kk*256+toff}" for h in range(2)]
        def ra(mt): return [f"ds_read_b128 {Q4(S_+mt*4)}, v{ca} offset:{mt*2048}"]
        return ra(0) + rb(0) + rb(1) + ra(1) + rb(2) + rb(3) + ra(2) + rb(4) + rb(5) + ra(3) + rb(6)
    def mfmas(S_, zero=False):
        out = []
        for mt in range(4):
            for t in range(7):
                c = ACC + (mt * 7 + t) * 4
                out.append(f"v_mfma_f32_16x16x32_bf16 {Q4(c)}, {Q4(S_+16+t*4)}, {Q4(S_+mt*4)}, {'0' if zero else Q4(c)}")
        return out
    setcur = [f"v_add_u32 v{c}, s46, v{b}" for c, b in ((cA0, vA0), (cA1, vA1), (cB0, vB0), (cB1, vB1), (cB2, vB2))]
    advs = [f"s_add_u32 s46, s46, {STAGE}", f"s_cmp_eq_u32 s46, {STAGE*NBUF}", "s_cselect_b32 s46, 0, s46"]
    for s in setcur: a(s)
    a(f"""
    buffer_store_dwordx4 v[232:235], v3, {R(sWS)}, s68 offen
    """)
    a("v_lshlrev_b32 v5, 3, v13")
    for t in range(6):
        a(f"buffer_load_dwordx2 {P2(BIAS+2*t)}, v5, {R(sB1)}, s44 offen offset:{t*32}")
    a(f"buffer_load_dwordx2 {P2(BIAS+12)}, v5, {R(sB1)}, s45 offen")
    a(f"""
    v_mov_b32 v226, 1
    s_and_b32 s48, s2, {opt.get("shard", 1)}
    s_lshl_b32 s48, s48, 6
    v_mov_b32 v227, s48
    s_lshl_b32 s48, s3, 8
    s_add_u32 s48, s48, {NCS+1}
    v_add_u32 v242, {STL}, v3
    s_lshl_b32 s49, s2, 10
    s_add_u32 s49, s49, {ST_OFF}
    """)
    a("s_waitcnt lgkmcnt(0)")
    if stamp == 1: S.st(3)
    a("s_barrier")
    if stamp == 1: S.st(4)
    for s in reads(FX, 0): a(s)
    a("s_waitcnt lgkmcnt(0)")
    for s in interleave(mfmas(FX, True), reads(FY, 1) + advs + setcur): a(s)
    a("s_mov_b32 s47, 1")
    a("s_waitcnt lgkmcnt(0)")
    L_loop = name + "_cloop"
    a.label(L_loop)
    a("s_barrier")
    a(f"""
    s_cmp_eq_u32 s47, s48
    s_cbranch_scc1 {name}_hook
    """)
    a.label(name + "_nopub")
    for s in interleave(mfmas(FY), reads(FX, 0)): a(s)
    a("s_waitcnt lgkmcnt(0)")
    for s in interleave(mfmas(FX), reads(FY, 1) + advs + setcur + ["s_add_u32 s47, s47, 1", "s_cmp_lt_u32 s47, 15"]): a(s)
    a(f"""
    s_waitcnt lgkmcnt(0)
    s_cbranch_scc1 {L_loop}
    s_barrier
    """)
    for s in interleave(mfmas(FY), reads(FX, 0)): a(s)
    a("s_waitcnt lgkmcnt(0)")
    pre = [f"s_lshl_b32 s47, s40, 9", f"s_add_u32 s47, s47, {EP}", f"v_lshl_add_u32 v4, v12, 3, s47",
           f"s_lshl_b32 s47, s41, 9", f"s_add_u32 s47, s47, {EP+1024}", f"v_lshl_add_u32 v5, v13, 4, s47",
           f"s_lshl_b32 s47, s41, 6", f"s_add_u32 s47, s47, {EP+1024+384}", f"v_lshl_add_u32 v6, v13, 4, s47"]
    for s in interleave(mfmas(FX), reads(FY, 1) + pre): a(s)
    a("s_waitcnt lgkmcnt(0)")
    a("s_barrier")
    CV, STV = FX, FX + 28
    epr = [f"ds_read_b128 {Q4(CV+4*t)}, v5 offset:{t*64}" for t in range(6)] + [f"ds_read_b128 {Q4(CV+24)}, v6"]
    epr += [f"ds_read_b64 {P2(STV+2*mt)}, v4 offset:{mt*128}" for mt in range(4)]
    sc = f"""s_lshl_b32 s48, s58, 3
    s_lshl_b32 s49, s40, 2
    s_add_u32 s48, s48, s49
    s_mul_i32 s48, s48, 112
    s_mul_i32 s49, s59, 7
    s_add_u32 s48, s48, s49
    s_add_u32 s50, s48, 3
    s_lshl_b32 s50, s50, 10
    s_lshl_b32 s49, s41, 3
    s_add_u32 s50, s50, s49
    s_lshl_b32 s49, s41, 2
    s_add_u32 s48, s48, s49
    s_lshl_b32 s48, s48, 10
    s_add_u32 s48, s48, {ACT_OFF}
    s_add_u32 s50, s50, {ACT_OFF}
    v_mov_b32 v8, 0x3fb8aa3b""".split("\n")
    for s in interleave(mfmas(FY), epr + sc, start=2): a(s)
    if stamp == 1: S.st(5)
    BV = FY
    a("s_waitcnt vmcnt(0)")
    for t in range(7):
        a(f"v_lshlrev_b32 v{BV+t*4+0}, 16, v{BIAS+2*t}")
        a(f"v_and_b32 v{BV+t*4+1}, 0xffff0000, v{BIAS+2*t}")
        a(f"v_lshlrev_b32 v{BV+t*4+2}, 16, v{BIAS+2*t+1}")
        a(f"v_and_b32 v{BV+t*4+3}, 0xffff0000, v{BIAS+2*t+1}")
    a("s_waitcnt lgkmcnt(0)")
    tmp = 200; PKO = 208
    pk = 0
    for mt in range(4):
        st = STV + 2 * mt
        for p in range(4):
            n = 8 if p < 3 else 4
            c = ACC + (mt * 7 + 2 * p) * 4
            fo = 8 * p
            E = range(0, n, 2)
            for i in E: a(f"v_pk_fma_f32 {P2(c+i)}, {P2(CV+fo+i)}, {P2(st)}, {P2(c+i)} op_sel_hi:[1,0,1] neg_lo:[1,0,0] neg_hi:[1,0,0]")
            for i in E: a(f"v_pk_fma_f32 {P2(c+i)}, {P2(c+i)}, {P2(st)}, {P2(BV+fo+i)} op_sel:[0,1,0]")
            for i in E: a(f"v_pk_mul_f32 {P2(tmp+i)}, {P2(c+i)}, v[8:9] op_sel_hi:[1,0]")
            for i in range(n): a(f"v_exp_f32 v{tmp+i}, v{tmp+i}")
            for i in E: a(f"v_pk_add_f32 {P2(tmp+i)}, {P2(tmp+i)}, 1.0 op_sel_hi:[1,0]")
            for i in E: a(f"v_pk_fma_f32 {P2(tmp+i)}, {P2(tmp+i)}, {P2(tmp+i)}, 1.0 op_sel_hi:[1,1,0]")
            for i in range(n): a(f"v_rcp_f32 v{tmp+i}, v{tmp+i}")
            for i in E: a(f"v_pk_fma_f32 {P2(tmp+i)}, {P2(tmp+i)}, -2.0, 1.0 op_sel_hi:[1,0,0]")
            for i in E: a(f"v_pk_mul_f32 {P2(c+i)}, {P2(c+i)}, {P2(tmp+i)}")
            d = PKO + (pk % 2) * 4; pk += 1
            for i in E: a(f"v_cvt_pk_bf16_f32 v{d+i//2}, v{c+i}, v{c+i+1}")
            if p < 3:
                a(f"buffer_store_dwordx4 {Q4(d)}, v3, {R(sWS)}, s48 offen offset:{p*1024}")
            else:
                a(f"buffer_store_dwordx2 {P2(d)}, v3, {R(sWS)}, s50 offen")
        if mt < 3:
            a(f"s_add_u32 s48, s48, {112*1024}")
            a(f"s_add_u32 s50, s50, {112*1024}")
    if stamp == 1:
        S.st(6); S.out(7)
    a.label(L_end)
    a("s_endpgm")
    a.label(name + "_hook")
    a(f"""
    s_cmp_eq_u32 s47, {NCS+1}
    s_cbranch_scc0 {name}_hook2
    ds_read_b128 v[244:247], v242
    s_mov_b32 s48, {NCS+2}
    s_branch {name}_nopub
    """)
    a.label(name + "_hook2")
    a(f"""
    s_cmp_eq_u32 s47, {NCS+2}
    s_cbranch_scc0 {name}_hook3
    buffer_store_dwordx4 v[244:247], v3, {R(sWS)}, s49 offen sc1
    s_mov_b32 s48, {PUBK}
    s_branch {name}_nopub
    """)
    a.label(name + "_hook3")
    a(f"""
    s_waitcnt vmcnt(0)
    s_mov_b64 exec, 1
    buffer_atomic_add v226, v227, {R(sDBG)}, 0 offen sc1
    s_mov_b64 exec, -1
    s_branch {name}_nopub
    """)
    return descriptor(name, 256)
```

```python
from asmlib import *
from layout import *
import tables2 as T
from k1 import R, P2, Q4, VM, Cap, mm, twiddle_pack

LDS_BYTES = 163840
ST1 = 45568
SP = 3 * ST1
XB = 2 * ST1
TB = XB + 16384
WROW = 3088
PC = SP
EP = SP + 8 * WROW
STL = EP
CSL = STL + 128
HC = EP + 2368
ST2 = 32768
TBL = 2 * ST2
PL = TBL + 40960
ZS = PL + 32768
NMLP, NDFT = 28, 8
sX, sW1, sTAB, sWS, sWR, sWI, sDBG, sW2, sB1 = 4, 8, 12, 16, 20, 24, 28, 32, 36
sOUT = sW1

def gen_mk(a, name, opt=None):
    opt = opt or {}
    PUBK = opt.get("pubk", 8)
    LATEK = opt.get("latek", 14)
    POLL_IT = opt.get("poll_it", 5)
    HK = opt.get("hk", 6)
    stamp = opt.get("stamp")
    S = Stamper(a, stamp, 70, 54, 55, 40, 44, STAMP_OFF, vt=(10, 11))
    def st(mode, i):
        if stamp == mode: S.st(i)
    def spin(label, cnt_addr_v, target, sreg, vt):
        a.label(label)
        a(f"""
        ds_read_b32 v{vt}, v{cnt_addr_v}
        s_waitcnt lgkmcnt(0)
        v_readfirstlane_b32 s{sreg}, v{vt}
        s_cmp_lt_u32 s{sreg}, {target}
        s_cbranch_scc1 {label}
        """)
    def arrive(addr, va, vb):
        a(f"""
        v_mov_b32 v{va}, {addr}
        v_mov_b32 v{vb}, 1
        s_mov_b64 exec, 1
        ds_add_u32 v{va}, v{vb}
        s_mov_b64 exec, -1
        """)
    kernel_begin(a, name)
    L_end = name + "_end"; L_comp = name + "_comp"
    a(f"s_cmp_ge_u32 s2, 256\ns_cbranch_scc1 {L_end}")
    if stamp: S.st(0)
    a(f"""
    s_load_dwordx4 s[40:43], s[0:1], 0      ; x, w_r
    s_load_dwordx4 s[48:51], s[0:1], 32     ; w1, b1
    s_load_dwordx4 s[52:55], s[0:1], 64
    s_load_dwordx2 s[44:45], s[0:1], 16     ; w_i
    s_load_dwordx2 s[46:47], s[0:1], 48     ; w2
    v_lshrrev_b32 v1, 6, v0
    v_and_b32 v2, 63, v0                    ; lane
    s_and_b32 s56, s2, 7                    ; x / q
    s_lshr_b32 s57, s2, 3                   ; j / idx
    v_readfirstlane_b32 s3, v1
    s_and_b32 s58, s56, 1
    s_lshl_b32 s58, s58, 3
    s_and_b32 s59, s57, 7
    s_add_u32 s58, s58, s59                 ; tile_m
    s_lshr_b32 s59, s56, 1
    s_lshl_b32 s59, s59, 2
    s_lshr_b32 s60, s57, 3
    s_add_u32 s59, s59, s60                 ; tile_n
    v_lshlrev_b32 v3, 4, v2                 ; lane*16
    s_getpc_b64 s[60:61]
    s_add_u32 s60, s60, fft_tab@rel32@lo+4
    s_addc_u32 s61, s61, fft_tab@rel32@hi+12
    """)
    srd(a, sTAB, 60, 61, T.TABLE_BYTES)
    a(f"""
    s_cmp_lt_u32 s3, 4
    s_cbranch_scc1 {L_comp}
    """)
    vm = VM(a)
    VA, VB, VW0, VST = 16, 20, 28, 30
    a(f"""
    v_mov_b32 v4, {HC}
    v_mov_b32 v8, 0
    v_mov_b32 v9, 0
    v_mov_b32 v10, 0
    v_mov_b32 v11, 0
    ds_write_b128 v4, v[8:11]
    v_and_b32 v4, 3, v2
    v_lshlrev_b32 v4, 4, v4
    v_add_u32 v4, {STL+64}, v4
    ds_write_b128 v4, v[8:11]
    s_sub_u32 s60, s3, 4                    ; lw
    v_lshlrev_b32 v14, 2, v2
    s_lshl_b32 s61, s57, 1
    s_lshl_b32 s62, s56, 8
    s_add_u32 s61, s61, s62
    s_lshl_b32 s62, s60, 6
    s_add_u32 s61, s61, s62
    s_mul_i32 s61, s61, 1026
    s_mul_i32 s64, s60, {2*WROW}
    s_lshl_b32 s62, s60, 8
    v_add_u32 v8, s62, v2
    s_lshl_b32 s62, s58, 18
    """)
    for ii in range(4):
        a(f"""
        v_add_u32 v4, {ii*64}, v8
        v_lshrrev_b32 v5, 3, v4
        v_and_b32 v6, 7, v4
        v_bfe_u32 v7, v4, 4, 3
        v_xor_b32 v6, v6, v7
        v_lshlrev_b32 v5, 11, v5
        v_lshl_add_u32 v5, v6, 4, v5
        v_add_u32 v5, s62, v5
        v_subrev_u32 v{VA+ii}, {ii*1024}, v5
        """)
    a(f"""
    v_cmp_lt_u32 vcc, 27, v2
    v_subrev_u32 v4, 28, v2
    s_mul_i32 s62, s59, 448
    s_mul_i32 s63, s60, {16*7168}
    s_add_u32 s62, s62, s63
    v_cndmask_b32 v4, v2, v4, vcc
    v_mov_b32 v5, s62
    v_add_u32 v6, 7168, v5
    v_cndmask_b32 v5, v5, v6, vcc
    v_lshl_add_u32 v6, v4, 4, v5
    v_xor_b32 v4, 2, v4
    v_lshl_add_u32 v7, v4, 4, v5
    v_cmp_lt_u32 vcc, 55, v2
    v_mov_b32 v4, 0x40000000
    s_nop 0
    v_cndmask_b32 v6, v6, v4, vcc
    v_cndmask_b32 v7, v7, v4, vcc
    """)
    for ii in range(8):
        a(f"v_add_u32 v{VB+ii}, {2*ii*7168 - (ii%4)*896}, v{6 if ii < 4 else 7}")
    a(f"""
    s_lshl_b32 s62, s60, 12
    s_mul_i32 s63, s60, 7296
    s_add_u32 s63, s63, 16384
    s_and_b32 s65, s57, 7
    s_lshl_b32 s65, s65, 1                  ; rot
    s_lshr_b32 s66, s57, 3
    s_mul_i32 s66, s66, {opt.get("rota", 0)}
    s_add_u32 s65, s65, s66
    s_and_b32 s65, s65, 15
    s_and_b32 s66, s56, 1
    s_waitcnt lgkmcnt(0)
    """)
    srd(a, sWR, 42, 43, 2048 * 513 * 2)
    srd(a, sWI, 44, 45, 2048 * 513 * 2)
    srd(a, sX, 40, 41, XN_BYTES)
    srd(a, sW1, 48, 49, 1024 * 3584 * 2)
    a("s_barrier")
    for arr, srd_ in enumerate((sWR, sWI)):
        a(f"s_add_u32 m0, s64, {SP+arr*WROW}\ns_nop 0")
        for i in range(3):
            vm.op(f"buffer_load_dwordx4 v3, {R(srd_)}, s61 offen offset:{i*1024} nt lds", "WD")
        a("s_mov_b64 exec, 3")
        vm.op(f"buffer_load_dword v14, {R(srd_)}, s61 offen offset:3072 nt lds", "WD")
        a("s_mov_b64 exec, -1")
    def issue(k, cap=None):
        buf = (k % 3) * ST1
        a(f"""
        s_lshl_b32 s68, s65, 7
        s_mul_i32 s69, s65, {64*7168}
        s_add_u32 m0, s62, {buf}
        s_add_u32 s65, s65, 1
        """)
        ch = cap.ch if cap else []
        for ii in range(4):
            vm.op(f"buffer_load_dwordx4 v{VA+ii}, {R(sX)}, s68 offen offset:{ii*1024} lds", f"D{k}")
        if len(ch) > 0: cap.emit(vm, ch[0])
        a(f"s_add_u32 m0, s63, {buf}\ns_and_b32 s65, s65, 15")
        for ii in range(4):
            vm.op(f"buffer_load_dwordx4 v{VB+ii}, {R(sW1)}, s69 offen offset:{ii*896} lds", f"D{k}")
        if len(ch) > 1: cap.emit(vm, ch[1])
        a(f"s_add_u32 m0, s63, {buf+3584}\ns_nop 0")
        for ii in range(4):
            vm.op(f"buffer_load_dwordx4 v{VB+4+ii}, {R(sW1)}, s69 offen offset:{ii*896} lds", f"D{k}")
        for c_ in ch[2:]: cap.emit(vm, c_)
    issue(0)
    srd(a, sWS, 54, 55, WS_SRD_BYTES)
    srd(a, sDBG, 52, 53, 256)
    srd(a, sW2, 46, 47, 3584 * 1024 * 2)
    srd(a, sB1, 50, 51, 3584 * 2)
    CSF, CSD, ONE = 128, 160, 176
    a(f"""
    s_lshl_b32 s40, s2, 2
    s_add_u32 s40, s40, s60
    s_lshl_b32 s41, s60, 6
    v_add_u32 v4, s41, v2                   ; t
    v_lshrrev_b32 v5, 4, v4
    v_and_b32 v6, 15, v4
    v_cmp_eq_u32 vcc, 0, v6
    v_lshl_add_u32 v7, v5, 5, v6
    v_add_u32 v12, 16, v7
    v_cndmask_b32 v12, v7, v12, vcc
    v_lshlrev_b32 v{VW0}, 1, v12
    v_add_u32 v{VW0}, {SP}, v{VW0}
    v_sub_u32 v7, 512, v7
    v_lshlrev_b32 v{VW0+1}, 1, v7
    v_add_u32 v{VW0+1}, {SP}, v{VW0+1}
    v_lshrrev_b32 v7, 3, v4
    v_lshlrev_b32 v7, 15, v7
    v_and_b32 v12, 7, v4
    v_lshl_add_u32 v{VST}, v12, 4, v7
    s_lshl_b32 s41, s56, 5
    s_add_u32 s41, s41, s57
    s_lshl_b32 s41, s41, 7                  ; (q*32+idx)*128
    v_mov_b32 v{ONE}, 0x3f803f80
    v_mov_b32 v{ONE+1}, 0x3f803f80
    v_mov_b32 v{ONE+2}, 0x3f803f80
    v_mov_b32 v{ONE+3}, 0x3f803f80
    v_lshrrev_b32 v4, 4, v2
    v_bfe_u32 v5, v2, 2, 2
    v_lshl_add_u32 v5, v4, 3, v5
    v_mul_u32_u24 v5, 448, v5
    v_and_b32 v6, 3, v2
    v_lshl_add_u32 v5, v6, 3, v5
    v_add_u32 v5, 16384, v5
    v_lshrrev_b32 v6, 1, v4
    v_lshl_add_u32 v5, v6, 7, v5
    s_mul_i32 s43, s66, {ST1}
    v_add_u32 v5, s43, v5
    v_and_b32 v6, 1, v4
    s_lshl_b32 s43, s60, 2
    """)
    for tt in range(4):
        a(f"""
        s_add_u32 s44, s43, {tt}
        s_min_u32 s44, s44, 13
        v_xor_b32 v7, s44, v6
        v_lshl_add_u32 v{180+tt}, v7, 5, v5
        s_lshl_b32 s44, s44, 6
        s_add_u32 s44, s44, {CSL}
        v_lshl_add_u32 v{184+tt}, v4, 4, s44
        """)
    a(f"""
    v_lshrrev_b32 v7, 1, v2
    v_lshlrev_b32 v7, 13, v7
    v_and_b32 v5, 1, v2
    v_lshl_add_u32 v32, v5, 2, v7
    s_and_b32 s45, s58, 7
    s_lshl_b32 s45, s45, 10
    s_lshr_b32 s44, s58, 3
    s_lshl_b32 s44, s44, 5
    s_add_u32 s45, s45, s44
    s_lshl_b32 s44, s60, 3
    s_add_u32 s45, s45, s44
    s_add_u32 s45, s45, {ST_OFF}
    s_lshr_b32 s46, s59, 2
    s_lshl_b32 s46, s46, 11
    s_and_b32 s44, s59, 3
    s_lshl_b32 s44, s44, 16
    s_add_u32 s46, s46, s44
    s_mul_i32 s44, s60, 224
    s_add_u32 s46, s46, s44
    s_add_u32 s46, s46, {ST_OFF+128}
    v_and_b32 v4, 15, v2
    v_min_u32 v4, 13, v4
    v_lshlrev_b32 v4, 4, v4
    v_lshrrev_b32 v5, 4, v2
    v_lshl_add_u32 v33, v5, 14, v4
    s_add_u32 s44, s44, {EP+1024}
    v_add_u32 v34, s44, v4
    v_lshlrev_b32 v12, 6, v2
    """)
    if opt.get("spf", 0):
        a(f"""
        s_mul_i32 s43, s2, 28672
        s_mul_i32 s44, s60, 7168
        s_add_u32 s43, s43, s44
        s_add_u32 s98, s{sW2}, s43
        s_addc_u32 s99, s{sW2+1}, 0
        """)
    vm.wait("WD")
    L = name + "_wf"
    a(f"""
    s_cmp_lg_u32 s40, 1023
    s_cbranch_scc1 {L}
    s_mov_b32 m0, {SP + 6*WROW + 2052}
    s_nop 0
    """)
    for arr, srd_ in enumerate((sWR, sWI)):
        for i in range(4): a(f"buffer_load_dword v14, {R(srd_)}, 0 offen offset:{i*256} lds")
        a(f"s_mov_b64 exec, 1\nbuffer_load_dword v14, {R(srd_)}, 0 offen offset:1024 lds\ns_mov_b64 exec, -1")
        if arr == 0: a(f"s_add_u32 m0, m0, {WROW}\ns_nop 0")
    a("s_waitcnt vmcnt(0)")
    a.label(L)
    st(3, 1)
    arrive(HC, 4, 5)
    spin(name + "_hs", 4, 4, 43, 5)
    for e in range(4):
        hf, ab = e >> 1, e & 1
        for i in range(4):
            row = ab if hf == 0 else 2 - ab
            si = i if hf == 0 else 3 - i
            a(f"ds_read_u16 v{192+4*e+i}, v{VW0+hf} offset:{si*2*WROW + row*1026}")
            a(f"ds_read_u16 v{208+4*e+i}, v{VW0+hf} offset:{si*2*WROW + WROW + row*1026}")
    a("s_waitcnt lgkmcnt(0)")
    arrive(HC + 8, 4, 5)
    st(3, 2)
    issue(1)
    a("s_mov_b32 s44, 0x80000000")
    for e in range(4):
        hf, ab = e >> 1, e & 1
        for i in range(4):
            a(f"v_lshl_or_b32 v{192+4*e+i}, v{208+4*e+i}, 16, v{192+4*e+i}")
            if hf: a(f"v_xor_b32 v{192+4*e+i}, s44, v{192+4*e+i}")
        if hf == 0: a(f"s_add_u32 s43, s41, {WT_OFF + (ab*64)*32768}")
        else: a(f"s_sub_u32 s43, {WT_OFF + (ab*64+32)*32768 + 255*128}, s41")
        vm.op(f"buffer_store_dwordx4 {Q4(192+4*e)}, v{VST}, {R(sWS)}, s43 offen sc1", "WT")
    def colsum(c, k):
        for part in range(3):
            L = a.newlabel(name + "_cq")
            c.begin()
            c(f"s_cmp_lg_u32 s66, {k}\ns_cbranch_scc1 {L}")
            if part < 2:
                for tt in (2 * part, 2 * part + 1):
                    for kk in range(2):
                        for h in range(2):
                            c(f"ds_read_b64_tr_b16 {P2(CSF+tt*8+kk*4+2*h)}, v{180+tt} offset:{(32*kk+4*h)*448+kk*256}")
            else:
                c("s_waitcnt lgkmcnt(0)")
                for kk in range(2):
                    for tt in range(4):
                        cc = "0" if kk == 0 else Q4(CSD + 4 * tt)
                        c(f"v_mfma_f32_16x16x32_bf16 {Q4(CSD+4*tt)}, {Q4(CSF+tt*8+kk*4)}, {Q4(ONE)}, {cc}")
            c.label(L)
            c.end()
    def poll_issue(off):
        L = a.newlabel(name + "_pi")
        a(f"""
        s_cmp_lg_u32 s60, 0
        s_cbranch_scc1 {L}
        s_mov_b64 exec, 3
        buffer_load_dword v15, v12, {R(sDBG)}, 0 offen offset:{off} sc1
        s_mov_b64 exec, -1
        """)
        a.label(L)
    def poll_check(off):
        L = a.newlabel(name + "_pl"); Ls = a.newlabel(name + "_ps")
        a(f"s_cmp_lg_u32 s60, 0\ns_cbranch_scc1 {Ls}")
        a.label(L)
        a(f"""
        v_readlane_b32 s43, v15, 0
        v_readlane_b32 s44, v15, 1
        s_add_u32 s43, s43, s44
        s_cmp_eq_u32 s43, 256
        s_cbranch_scc1 {Ls}
        s_sleep 4
        s_mov_b64 exec, 3
        buffer_load_dword v15, v12, {R(sDBG)}, 0 offen offset:{off} sc1
        s_mov_b64 exec, -1
        s_waitcnt vmcnt(0)
        s_branch {L}
        """)
        a.label(Ls)
    for k in range(16):
        vm.wait(f"D{k}", *({LATEK: ["INV"]}.get(k, [])))
        if k == LATEK: poll_check(0)
        if k <= 3: a("s_waitcnt lgkmcnt(0)")
        a("s_barrier")
        if k == 0: st(3, 3)
        if k == LATEK - 1:
            poll_issue(0); vm.q.append("INV")
        c = Cap(a)
        if k < 2: colsum(c, k)
        if k == 2:
            c.begin()
            c("s_mov_b32 exec_lo, 0x00010001\ns_mov_b32 exec_hi, 0x00010001")
            for tt in range(4): c(f"ds_write_b128 v{184+tt}, {Q4(CSD+4*tt)}")
            c("s_mov_b64 exec, -1")
            c.end()
        K0, K1 = opt.get("spfk", [3, 13])
        if opt.get("spf", 0) and K0 <= k <= K1:
            n = K1 - K0 + 1
            ids = list(range((k - K0) * 56 // n, (k - K0 + 1) * 56 // n))
            for part in range(3):
                c.begin()
                for i in ids[part::3]: c(f"s_load_dword s100, s[98:99], {128*i}")
                c.end()
        if k + 2 < 16: issue(k + 2, c)
        if k == LATEK:
            a(f"s_lshl_b32 s44, s60, 8\ns_add_u32 m0, s44, {EP}\ns_add_u32 s44, s46, 8192")
            vm.op(f"buffer_load_dword v32, {R(sWS)}, s45 offen sc1 lds", "SL")
            for i in range(4):
                vm.op(f"buffer_load_dwordx4 {Q4(240+4*i)}, v33, {R(sWS)}, s{46 if i < 2 else 44} offen offset:{(i&1)*1024} sc1", "CL")
            a(f"""
            s_mul_i32 s43, s59, 448
            s_mul_i32 s44, s60, 112
            s_add_u32 s43, s43, s44
            s_add_u32 m0, s44, {EP+1920}
            s_mov_b64 exec, 0x0fffffff
            """)
            vm.op(f"buffer_load_dword v14, {R(sB1)}, s43 offen lds", "SL")
            a("s_mov_b64 exec, -1")
        if k == 14:
            a(f"""
            s_and_b32 s49, s2, 7
            s_lshl_b32 s49, s49, 1
            s_bfe_u32 s43, s2, 0x10003
            s_add_u32 s49, s49, s43
            s_and_b32 s43, s2, 0xf0
            s_add_u32 s49, s49, s43             ; jb
            s_lshr_b32 s47, s2, 7
            s_mul_i32 s47, s47, 40960
            s_mul_i32 s48, s60, 10240
            s_add_u32 s47, s47, s48
            s_add_u32 s47, s47, {T.SETS["M1_0"]}
            v_lshrrev_b32 v6, 2, v2
            v_lshlrev_b32 v6, 7, v6
            v_and_b32 v5, 3, v2
            v_lshl_add_u32 v6, v5, 4, v6
            s_lshr_b32 s50, s49, 1
            s_lshl_b32 s50, s50, 15
            s_and_b32 s43, s49, 1
            s_lshl_b32 s43, s43, 6
            s_add_u32 s50, s50, s43
            s_lshl_b32 s43, s60, 13
            s_add_u32 s50, s50, s43
            """)
        if k == 15:
            vm.wait("CL", "SL")
            for x, y in ((240, 244), (242, 246), (248, 252), (250, 254), (240, 248), (242, 250)):
                a(f"v_pk_add_f32 {P2(x)}, {P2(x)}, {P2(y)}")
            for sw in ("v_permlane32_swap_b32", "v_permlane16_swap_b32"):
                for i in range(4): a(f"v_mov_b32 v{244+i}, v{240+i}")
                a("s_nop 0")
                for i in range(4): a(f"{sw} v{240+i}, v{244+i}")
                a(f"v_pk_add_f32 v[240:241], v[240:241], v[244:245]")
                a(f"v_pk_add_f32 v[242:243], v[242:243], v[246:247]")
            a("ds_write_b128 v34, v[240:243]")
            for off, lds in ((P_OFF, PL), (WT_OFF, PL + 16384)):
                a(f"s_add_u32 m0, s62, {lds}\ns_add_u32 s43, s50, {off}")
                for i in range(4):
                    a(f"buffer_load_dwordx4 v6, {R(sWS)}, s43 offen sc1 lds")
                    if i < 3: a("s_add_u32 m0, m0, 1024\ns_add_u32 s43, s43, 2048")
            a("s_waitcnt lgkmcnt(0)\ns_barrier")
            a(f"s_add_u32 m0, s48, {TBL}\ns_nop 0")
            for i in range(10):
                if i in (4, 8): a("s_add_u32 m0, m0, 4096\ns_add_u32 s47, s47, 4096")
                a(f"buffer_load_dwordx4 v3, {R(sTAB)}, s47 offen offset:{(i%4)*1024} lds")
    VB2 = 16
    a(f"""
    s_and_b32 s50, s2, 1                    ; u
    s_bfe_u32 s52, s2, 0x10001
    s_lshl_b32 s52, s52, 3
    s_and_b32 s53, s57, 7
    s_add_u32 s52, s52, s53                 ; tile_r
    s_bfe_u32 s53, s2, 0x10002
    s_lshl_b32 s53, s53, 2
    s_lshr_b32 s43, s57, 3
    s_add_u32 s53, s53, s43                 ; tile_c
    s_lshr_b32 s46, s60, 1
    s_xor_b32 s46, s46, s50
    s_lshl_b32 s46, s46, 1
    s_and_b32 s47, s60, 1                   ; half
    s_lshl_b32 s43, s47, 4
    s_add_u32 s43, s43, s52
    s_lshl_b32 s43, s43, 1
    s_add_u32 s43, s43, s50
    s_lshl_b32 s43, s43, 10
    s_add_u32 s51, s43, {ST_OFF+64}
    s_lshl_b32 s47, s47, 6
    s_add_u32 s46, s46, s47
    s_lshl_b32 s47, s52, 2
    s_add_u32 s46, s46, s47
    s_mul_i32 s46, s46, 112
    s_mul_i32 s47, s50, 56
    s_add_u32 s46, s46, s47
    s_lshl_b32 s46, s46, 10
    s_add_u32 s46, s46, {ACT_OFF}           ; sA0
    s_mul_i32 s48, s50, {1792*2048}         ; sB
    s_lshl_b32 s43, s53, 7
    s_lshl_b32 s44, s60, 15
    s_add_u32 s43, s43, s44
    v_lshrrev_b32 v4, 4, v2
    v_and_b32 v5, 15, v2
    """)
    for ii in range(4):
        a(f"""
        v_add_u32 v6, {4*ii}, v4
        v_and_b32 v7, 7, v6
        v_lshlrev_b32 v7, 1, v7
        v_xor_b32 v7, v7, v5
        v_and_b32 v8, 7, v7
        v_lshrrev_b32 v7, 3, v7
        v_lshlrev_b32 v6, 11, v6
        v_lshl_add_u32 v6, v8, 4, v6
        v_lshl_add_u32 v6, v7, 10, v6
        v_add_u32 v6, s43, v6
        v_subrev_u32 v{VB2+ii}, {ii*1024}, v6
        """)
    a(f"""
    s_and_b32 s66, s57, 7
    s_mul_i32 s66, s66, 7
    s_lshr_b32 s66, s66, 1                  ; rot
    s_lshl_b32 s67, s66, 11
    s_add_u32 s46, s46, s67
    s_add_u32 s47, s46, {112*1024-2048}
    s_lshl_b32 s67, s66, 17
    s_add_u32 s48, s48, s67
    s_lshl_b32 s63, s52, 1
    s_add_u32 s63, s63, s50
    s_lshl_b32 s63, s63, 17
    s_lshr_b32 s64, s60, 1
    s_lshl_b32 s64, s64, 16
    s_add_u32 s63, s63, s64
    s_and_b32 s64, s60, 1
    s_lshl_b32 s64, s64, 12
    s_add_u32 s63, s63, s64
    s_add_u32 s63, s63, {Z_OFF}
    s_lshl_b32 s64, s53, 17
    s_add_u32 s64, s64, s62
    s_add_u32 s64, s64, {G_OFF}
    v_mov_b32 v13, 0
    """)
    def ldA(mexpr):
        a(f"""
        {mexpr}
        s_nop 0
        buffer_load_dwordx4 v3, {R(sWS)}, s46 offen sc1 lds
        buffer_load_dwordx4 v3, {R(sWS)}, s46 offen offset:1024 sc1 lds
        buffer_load_dwordx4 v3, {R(sWS)}, s47 offen offset:2048 sc1 lds
        buffer_load_dwordx4 v3, {R(sWS)}, s47 offen offset:3072 sc1 lds
        """)
    def ldB(mexpr):
        a(f"{mexpr}\ns_nop 0")
        for ii in range(4):
            a(f"buffer_load_dwordx4 v{VB2+ii}, {R(sW2)}, s48 offen offset:{ii*1024} lds")
    def firstB(s_): ldB(f"s_add_u32 m0, s62, {s_*ST2+16384}"); a(f"s_add_u32 s48, s48, {64*2048}")
    if opt.get("earlyb"): firstB(0); firstB(1)
    a(f"s_waitcnt vmcnt({8 if opt.get('earlyb') else 0})")
    st(3, 4)
    a("s_barrier")
    if not opt.get("earlyb"): firstB(0); firstB(1)
    a("s_barrier")
    firstB(2); firstB(3)
    a(f"""
    s_lshl_b32 s43, s66, 1
    s_mul_i32 s44, s43, 37
    s_lshr_b32 s44, s44, 8
    s_add_u32 s43, s43, 7
    s_mul_i32 s43, s43, 37
    s_lshr_b32 s43, s43, 8
    s_lshl_b32 s44, 1, s44
    s_lshl_b32 s43, 1, s43
    s_or_b32 s45, s43, s44
    """)
    def act_poll(lbl, maskreg):
        a.label(lbl)
        a(f"""
        s_mov_b64 exec, 0xff
        buffer_load_dword v15, v14, {R(sWS)}, s51 offen sc1
        s_waitcnt vmcnt(0)
        v_cmp_eq_u32 vcc, 2, v15
        s_mov_b64 exec, -1
        s_nop 3
        s_and_b32 s43, vcc_lo, {maskreg}
        s_cmp_eq_u32 s43, {maskreg}
        s_cbranch_scc1 {lbl}_ok
        s_sleep 1
        s_branch {lbl}
        """)
        a.label(lbl + "_ok")
    act_poll(name + "_ap", "s45")
    a("s_and_b32 s49, vcc_lo, 0xff")
    st(3, 5)
    for s_ in range(4):
        ldA(f"s_add_u32 m0, s62, {s_*ST2}")
        a("s_add_u32 s46, s46, 2048\ns_add_u32 s47, s47, 2048")
    a(f"""
    s_add_u32 s66, s66, 4
    s_cmp_eq_u32 s66, 28
    s_cselect_b32 s67, 28, 0
    s_lshl_b32 s68, s67, 17
    s_lshl_b32 s67, s67, 11
    s_sub_u32 s46, s46, s67
    s_sub_u32 s47, s47, s67
    s_sub_u32 s48, s48, s68
    s_mov_b32 s61, 0
    """)
    def adv(): a(f"s_add_u32 s61, s61, {ST2}\ns_and_b32 s61, s61, {ST2*4-1}")
    def issue_mlp():
        ldA("s_add_u32 m0, s61, s62")
        ldB("s_add_u32 m0, m0, 16384")
        a(f"""
        s_add_u32 s66, s66, 1
        s_cmp_eq_u32 s66, 28
        s_cselect_b32 s67, -27, 1
        s_lshl_b32 s68, s67, 17
        s_lshl_b32 s67, s67, 11
        s_add_u32 s46, s46, s67
        s_add_u32 s47, s47, s67
        s_add_u32 s48, s48, s68
        """)
        adv()
    def issue_dft():
        a("s_add_u32 m0, s61, s62\ns_nop 0")
        for ii in range(4): a(f"buffer_load_dwordx4 v3, {R(sWS)}, s63 offen offset:{ii*1024} sc1 lds")
        a("s_add_u32 m0, m0, 16384\ns_nop 0")
        for ii in range(4): a(f"buffer_load_dwordx4 v3, {R(sWS)}, s64 offen offset:{ii*1024} sc1 lds")
        a("s_add_u32 s63, s63, 8192\ns_add_u32 s64, s64, 16384")
        adv()
    a("s_waitcnt vmcnt(12)\ns_barrier")
    st(3, 6)
    a("s_waitcnt vmcnt(8)\ns_barrier")
    a(f"s_mov_b32 s45, 0xff\ns_cmp_eq_u32 s49, s45\ns_cbranch_scc1 {name}_ar_ok")
    act_poll(name + "_ar", "s45")
    issue_mlp()
    a("s_waitcnt vmcnt(12)\ns_barrier")
    issue_mlp()
    a("s_mov_b32 s65, 3")
    a.label(name + "_l1")
    a("s_waitcnt vmcnt(16)\ns_barrier")
    issue_mlp()
    a(f"""
    s_add_u32 s65, s65, 1
    s_cmp_le_u32 s65, 22
    s_cbranch_scc1 {name}_l1
    s_waitcnt vmcnt(16)
    s_barrier
    """)
    poll_issue(128)
    issue_mlp()
    a("s_waitcnt vmcnt(16)\ns_barrier")
    issue_mlp()
    a("s_waitcnt vmcnt(16)")
    poll_check(128)
    a("s_mov_b32 s65, 25")
    a.label(name + "_l2")
    a("s_waitcnt vmcnt(16)\ns_barrier")
    issue_dft()
    a(f"""
    s_add_u32 s65, s65, 1
    s_cmp_le_u32 s65, 32
    s_cbranch_scc1 {name}_l2
    """)
    for i in (2, 1, 0): a(f"s_waitcnt vmcnt({8*i})\ns_barrier")
    if stamp == 3: S.out(7)
    a("s_endpgm")
    import mk_c
    mk_c.gen_c(a, name, opt, S, st, spin, arrive, L_comp, L_end)
    return descriptor(name, 256)
```

```python
from asmlib import *
from layout import *
import tables2 as T
from k1 import R, P2, Q4, mm, twiddle_pack
from mk import *

def gen_c(a, name, opt, S, st, spin, arrive, L_comp, L_end):
    stamp = opt.get("stamp")
    PUBK = opt.get("pubk", 7); POLL_IT = opt.get("poll_it", 5); HK = opt.get("hk", 9)
    a.label(L_comp)
    a(f"""
    s_lshl_b32 s60, s56, 2
    s_add_u32 s60, s60, s3                  ; n1
    s_lshl_b32 s60, s60, 5
    s_add_u32 s60, s60, s57                 ; n
    s_lshl_b32 s61, s60, 11
    s_add_u32 s62, s61, {1024*2048}
    s_lshl_b32 s63, s3, 12
    s_add_u32 s63, s63, {XB}
    s_mul_i32 s64, s3, 7168
    s_add_u32 m0, s64, {TB}
    s_nop 0
    """)
    for i in range(7):
        if i == 4: a("s_add_u32 m0, m0, 4096\ns_add_u32 s64, s64, 4096")
        a(f"buffer_load_dwordx4 v3, {R(sTAB)}, s64 offen offset:{(i%4)*1024} lds")
    a("s_waitcnt lgkmcnt(0)")
    srd(a, sX, 40, 41, XN_BYTES)
    a(f"""
    s_mov_b32 m0, s63
    s_load_dwordx2 s[42:43], s[0:1], 56     ; out
    buffer_load_dwordx4 v3, {R(sX)}, s61 offen lds
    buffer_load_dwordx4 v3, {R(sX)}, s61 offen offset:1024 lds
    s_add_u32 m0, m0, 2048
    s_nop 0
    buffer_load_dwordx4 v3, {R(sX)}, s62 offen lds
    buffer_load_dwordx4 v3, {R(sX)}, s62 offen offset:1024 lds
    s_lshr_b32 s44, s2, 7
    s_mul_i32 s44, s44, 40960
    s_bfe_u32 s45, s2, 0x40003
    s_lshl_b32 s45, s45, 2
    s_add_u32 s45, s45, s3
    s_mul_i32 s45, s45, 640
    s_add_u32 s44, s44, s45
    s_add_u32 s44, s44, {T.SETS["M1_0"]}
    v_lshlrev_b32 v4, 7, v2
    s_mov_b64 exec, 31
    buffer_load_dword v254, v4, {R(sTAB)}, s44 offen
    s_mov_b64 exec, -1
    s_barrier
    """)
    srd(a, sDBG, 52, 53, 256)
    srd(a, sWS, 54, 55, WS_SRD_BYTES)
    srd(a, sW2, 46, 47, 3584 * 1024 * 2)
    a(f"""
    s_and_b32 s44, s2, 1
    s_mul_i32 s44, s44, 1792
    s_mul_i32 s45, s57, 56
    s_add_u32 s44, s44, s45
    s_lshl_b32 s44, s44, 11
    s_bfe_u32 s45, s2, 0x10002
    s_lshl_b32 s45, s45, 9
    s_add_u32 s44, s44, s45
    v_lshrrev_b32 v4, 3, v2
    v_lshlrev_b32 v4, 11, v4
    v_and_b32 v5, 3, v2
    v_lshl_add_u32 v4, v5, 7, v4
    v_bfe_u32 v5, v2, 2, 1
    v_lshl_add_u32 v4, v5, 10, v4
    v_add_u32 v234, s44, v4
    """)
    a(f"""
    s_lshl_b32 s66, s2, 2
    s_add_u32 s66, s66, s3
    s_lshr_b32 s67, s66, 7
    s_and_b32 s68, s66, 3
    s_lshl_b32 s67, s67, 2
    s_add_u32 s67, s67, s68
    s_lshl_b32 s67, s67, 4
    s_bfe_u32 s68, s66, 0x50002
    s_lshl_b32 s68, s68, 4
    v_and_b32 v4, 15, v2
    v_add_u32 v4, s67, v4
    v_lshrrev_b32 v5, 4, v2
    v_lshl_add_u32 v5, v5, 2, s68
    s_mov_b32 s69, 0x3a800000
    """)
    for jj in range(4):
        a(f"""
        v_add_u32 v6, {jj}, v5
        v_bfe_u32 v7, v6, 3, 5
        v_and_b32 v8, 7, v6
        v_lshrrev_b32 v9, 8, v6
        v_lshl_add_u32 v8, v8, 1, v9
        v_and_b32 v9, 16, v7
        v_or_b32 v9, v9, v8
        v_cmp_eq_u32 vcc, 0, v9
        v_lshl_add_u32 v9, v7, 5, v8
        v_add_u32 v7, 16, v9
        v_cndmask_b32 v9, v9, v7, vcc
        v_mul_u32_u24 v7, v9, v4
        v_and_b32 v7, 1023, v7
        v_cvt_f32_u32 v7, v7
        v_mul_f32 v7, s69, v7
        v_cmp_eq_u32 vcc, 512, v9
        v_cos_f32 v8, v7
        v_sin_f32 v7, v7
        v_mul_f32 v9, 0.5, v8
        v_cndmask_b32 v8, v8, v9, vcc
        v_cvt_pk_bf16_f32 v{236+jj}, v8, -v7
        """)
    ACC, FX, FY = 16, 128, 176
    cA, cB = 224, 228
    vPR, vST = 232, 233
    a(f"""
    s_lshr_b32 s40, s3, 1                   ; wm
    s_and_b32 s41, s3, 1                    ; wn
    v_and_b32 v12, 15, v2                   ; i
    v_lshrrev_b32 v13, 4, v2                ; g
    v_lshrrev_b32 v6, 1, v12
    v_xor_b32 v6, v6, v13
    s_lshl_b32 s46, s40, 13
    s_lshl_b32 s47, s41, 12
    s_add_u32 s46, s46, s47
    s_xor_b32 s47, s46, 4096
    v_lshlrev_b32 v7, 7, v12
    v_lshl_add_u32 v8, v6, 4, v7
    v_add_u32 v{cA}, s46, v8
    v_add_u32 v{cA+1}, s47, v8
    v_xor_b32 v8, 64, v8
    v_add_u32 v{cA+2}, s46, v8
    v_add_u32 v{cA+3}, s47, v8
    v_lshrrev_b32 v6, 2, v12
    v_lshl_add_u32 v6, v13, 3, v6
    v_mul_u32_u24 v6, 448, v6
    v_and_b32 v7, 3, v2
    v_lshl_add_u32 v6, v7, 3, v6
    v_add_u32 v6, 16384, v6
    v_lshrrev_b32 v7, 1, v13
    v_lshl_add_u32 v6, v7, 7, v6
    v_and_b32 v7, 1, v13
    v_lshlrev_b32 v7, 5, v7
    v_add_u32 v{cB+2}, v6, v7
    v_sub_u32 v{cB+3}, v6, v7
    s_lshl_b32 s46, s41, 8
    v_add_u32 v{cB}, s46, v{cB+2}
    v_add_u32 v{cB+1}, s46, v{cB+3}
    v_lshrrev_b32 v5, 4, v0
    v_mul_u32_u24 v5, 272, v5
    v_lshl_add_u32 v5, v12, 4, v5
    v_add_u32 v{vPR}, {PC}, v5
    v_lshrrev_b32 v5, 3, v0
    v_lshlrev_b32 v5, 15, v5
    v_and_b32 v6, 7, v0
    v_lshl_add_u32 v{vST}, v6, 4, v5
    s_lshl_b32 s50, s56, 5
    s_add_u32 s50, s50, s57
    s_lshl_b32 s50, s50, 7
    s_add_u32 s50, s50, {P_OFF}
    v_lshrrev_b32 v5, 5, v2
    v_bfe_u32 v6, v2, 2, 2
    v_lshl_add_u32 v5, v5, 3, v6
    v_lshlrev_b32 v5, 6, v5
    v_bfe_u32 v6, v2, 4, 1
    v_lshl_add_u32 v5, v6, 5, v5
    v_and_b32 v6, 3, v2
    v_lshl_add_u32 v5, v6, 3, v5
    v_add_u32 v5, s63, v5
    v_add_u32 v14, {TB}, v3
    v_and_b32 v6, 31, v2
    v_mul_u32_u24 v6, 272, v6
    v_lshrrev_b32 v7, 5, v2
    v_lshl_add_u32 v6, v7, 6, v6
    s_lshl_b32 s46, s3, 2
    s_add_u32 s46, s46, {PC}
    v_add_u32 v15, s46, v6
    s_mov_b32 s47, 0x3f803f80
    s_mov_b32 s48, 0x3a800000
    s_lshl_b32 s68, s66, 10
    s_add_u32 s68, s68, {G_OFF}
    s_waitcnt vmcnt(1) lgkmcnt(0)
    """)
    srd(a, sOUT, 42, 43, XN_BYTES)
    arrive(HC + 4, 4, 6)
    A1, B1, D0, D1, TWc, TWs, RF, RSP, PK, D2r, D2i = 16, 32, 40, 56, 72, 88, 104, 136, 168, 184, 200
    Sr, Si = 72, 88
    for t in range(4):
        for e in range(2):
            a(f"ds_read_b64_tr_b16 {P2(A1+4*t+2*e)}, v5 offset:{(t//2)*2048 + (16*(t%2)+4*e)*64}")
    spin(name + "_cs", 4, 4, 64, 6)
    a(f"ds_read_b128 {Q4(B1)}, v14 offset:{T.SETS['RB1']}")
    a(f"ds_read_b128 {Q4(B1+4)}, v14 offset:{T.SETS['RB1']+1024}")
    a("s_waitcnt lgkmcnt(0)")
    st(1, 1)
    mm(a, D0, A1, B1, 2); mm(a, D1, A1 + 8, B1, 2)
    for qd in range(8): a(f"ds_read_b128 {Q4(TWc+4*qd)}, v14 offset:{T.SETS['RTW']+qd*1024}")
    for qd in range(7): a(f"ds_read_b128 {Q4(RSP+4*qd)}, v14 offset:{T.SETS['RSP']+qd*1024}")
    for w in range(8):
        for rho in range(2):
            x = A1 + 8 * rho + w
            a(f"v_dot2_f32_bf16 v{4+rho}, v{x}, s47, {'0' if w == 0 else 'v%d' % (4+rho)}")
        for rho in range(2):
            x = A1 + 8 * rho + w
            a(f"v_dot2_f32_bf16 v{6+rho}, v{x}, v{x}, {'0' if w == 0 else 'v%d' % (6+rho)}")
    a("s_nop 2")
    for sh, m in (("row_ror:8", "0xf"), ("row_ror:4", "0xf"), ("row_ror:2", "0xf"), ("row_ror:1", "0xf"), ("row_bcast:15", "0xa"), ("row_bcast:31", "0xc")):
        for r in range(4, 8):
            a(f"v_add_f32_dpp v{r}, v{r}, v{r} {sh} row_mask:{m} bank_mask:0xf")
    for r in range(4): a(f"v_readlane_b32 s{64+r}, v{4+r}, 63")
    a(f"""
    v_mov_b32 v8, s48
    s_nop 0
    v_mul_f32 v4, s64, v8
    v_mul_f32 v5, s65, v8
    v_mul_f32 v6, s66, v8
    v_mul_f32 v7, s67, v8
    v_fma_f32 v6, -v4, v4, v6
    v_fma_f32 v7, -v5, v5, v7
    v_max_f32 v6, 0, v6
    v_max_f32 v7, 0, v7
    v_cvt_pk_bf16_f32 v6, v6, v7
    v_and_b32 v7, 0xffff0000, v6
    v_lshlrev_b32 v6, 16, v6
    v_add_f32 v6, 0x3727c5ac, v6
    v_add_f32 v7, 0x3727c5ac, v7
    v_cvt_pk_bf16_f32 v6, v6, v7
    v_and_b32 v7, 0xffff0000, v6
    v_lshlrev_b32 v6, 16, v6
    v_sqrt_f32 v6, v6
    v_sqrt_f32 v7, v7
    v_and_b32 v8, 16, v2
    v_cmp_eq_u32 vcc, 0, v8
    v_cvt_pk_bf16_f32 v6, v6, v7
    v_and_b32 v7, 0xffff0000, v6
    v_cndmask_b32 v8, v5, v4, vcc
    v_cmp_eq_u32 vcc, 0, v12
    v_lshlrev_b32 v6, 16, v6
    v_mul_f32 v8, 0x42000000, v8
    v_rcp_f32 v10, v6
    v_rcp_f32 v11, v7
    v_cndmask_b32 v8, 0, v8, vcc
    v_cvt_pk_bf16_f32 v4, v4, v5
    v_and_b32 v244, 0xffff0000, v4
    v_lshlrev_b32 v242, 16, v4
    v_mov_b32 v243, v10
    v_mov_b32 v245, v11
    s_lshl_b32 s64, s3, 3
    s_add_u32 s64, s64, {STL}
    v_mov_b32 v4, s64
    ds_write_b64 v4, v[242:243]
    ds_write_b64 v4, v[244:245] offset:32
    s_waitcnt lgkmcnt(0)
    """)
    a(f"ds_read_b128 {Q4(RSP+28)}, v14 offset:{T.SETS['RSP']+7*1024}")
    for qd in range(8): a(f"ds_read_b128 {Q4(RF+4*qd)}, v14 offset:{T.SETS['RF']+qd*1024}")
    for r in range(16): a(f"v_permlane16_swap_b32 v{D0+r}, v{D1+r}")
    for r in range(0, 16, 2):
        a(f"v_pk_add_f32 {P2(D0+r)}, {P2(D0+r)}, v[8:9] op_sel_hi:[1,0] neg_lo:[0,1] neg_hi:[0,1]")
    twiddle_pack(a, D0, D1, TWc, TWs, PK, 246)
    a("s_waitcnt lgkmcnt(0)\ns_nop 0")
    mm(a, Sr, PK, RSP); mm(a, Si, PK, RSP + 16)
    mm(a, D2r, PK, RF); mm(a, D2i, PK, RF + 16)
    a(f"v_mov_b32 v4, {HC+8}")
    spin(name + "_cw", 4, 4, 64, 6)
    a(f"""
    s_nop 7
    s_mov_b32 exec_hi, 0
    v_mov_b32 v{D2r}, v{Sr}
    v_mov_b32 v{D2r+8}, v{Sr+8}
    v_mov_b32 v{D2i}, v{Si}
    v_mov_b32 v{D2i+8}, v{Si+8}
    s_mov_b32 exec_hi, -1
    """)
    for r in range(0, 8, 2):
        for D, o in ((D2r, 40), (D2i, 56)):
            a(f"v_pk_mul_f32 v[4:5], {P2(D+r)}, v[10:11] op_sel_hi:[1,0]")
            a(f"v_pk_fma_f32 {P2(o+r)}, {P2(D+8+r)}, v[10:11], v[4:5] op_sel:[0,1,0]")
            a(f"v_pk_fma_f32 {P2(o+8+r)}, {P2(D+8+r)}, v[10:11], v[4:5] op_sel:[0,1,0] neg_lo:[1,0,0] neg_hi:[1,0,0]")
        for ab in range(2):
            for rr in (r, r + 1):
                a(f"v_cvt_pk_bf16_f32 v{16+8*ab+rr}, v{40+8*ab+rr}, v{56+8*ab+rr}")
                a(f"ds_write_b32 v15, v{16+8*ab+rr} offset:{ab*32*272 + (8*(rr//4)+rr%4)*16}")
    def acc(mt, t): return ACC + (mt * 6 + t) * 4 if t < 6 else ACC + 96 + (mt * 2 + t - 6) * 4
    def reads(S_, kk):
        def rb(t):
            base = cB + (t & 1) + (2 if t >= 6 else 0)
            return [f"ds_read_b64_tr_b16 {P2(S_+16+t*4+2*h)}, v{base} offset:{(32*kk+4*h)*448+kk*256+t*32}" for h in range(2)]
        def ra(mt): return [f"ds_read_b128 {Q4(S_+mt*4)}, v{cA+2*kk+(mt>>1)} offset:{(mt&1)*2048}"]
        return ra(0) + rb(0) + rb(1) + ra(1) + rb(2) + rb(3) + ra(2) + rb(4) + rb(5) + ra(3) + rb(6) + rb(7)
    def mfmas(S_, zero=False):
        out = []
        for mt in range(4):
            for t in range(8 if mt < 2 else 6):
                c = acc(mt, t)
                out.append(f"v_mfma_f32_16x16x32_bf16 {Q4(c)}, {Q4(S_+16+t*4)}, {Q4(S_+mt*4)}, {'0' if zero else Q4(c)}")
        return out
    nxt = ["s_add_u32 s46, s46, 1", "s_cmp_eq_u32 s46, 3", f"s_cselect_b32 s49, s51, s52", "s_cselect_b32 s46, 0, s46"]
    upA0 = [f"v_add_u32 v{cA+i}, s49, v{cA+i}" for i in (0, 1)]
    upA1 = [f"v_add_u32 v{cA+i}, s49, v{cA+i}" for i in (2, 3)]
    upB = [f"v_add_u32 v{cB+i}, s49, v{cB+i}" for i in range(4)]
    a(f"""
    s_mov_b32 s46, 0
    s_mov_b32 s51, {(-2*ST1) & 0xffffffff}
    s_mov_b32 s52, {ST1}
    v_mov_b32 v14, 1
    s_and_b32 s48, s2, 1
    s_lshl_b32 s48, s48, 6
    v_mov_b32 v15, s48
    s_mov_b32 s48, 1
    v_add_u32 v10, {STL}, v3
    s_lshl_b32 s53, s2, 10
    s_add_u32 s53, s53, {ST_OFF}
    s_waitcnt lgkmcnt(0)
    """)
    st(1, 2)
    a("s_barrier")
    st(1, 3)
    for s in reads(FX, 0): a(s)
    for s in nxt + upA0: a(s)
    a("s_waitcnt lgkmcnt(0)")
    for s in interleave(mfmas(FX, True), reads(FY, 1) + upB): a(s)
    a("s_mov_b32 s47, 1\ns_waitcnt lgkmcnt(0)")
    a.label(name + "_cloop")
    a("s_barrier")
    a(f"s_cmp_eq_u32 s47, s48\ns_cbranch_scc1 {name}_hook")
    a.label(name + "_back")
    for s in interleave(mfmas(FY), upA1 + reads(FX, 0) + nxt + upA0): a(s)
    a("s_waitcnt lgkmcnt(0)")
    for s in interleave(mfmas(FX), reads(FY, 1) + upB + ["s_add_u32 s47, s47, 1", "s_cmp_lt_u32 s47, 15"]): a(s)
    a(f"""
    s_waitcnt lgkmcnt(0)
    s_cbranch_scc1 {name}_cloop
    s_barrier
    """)
    for s in interleave(mfmas(FY), upA1 + reads(FX, 0)): a(s)
    a("s_waitcnt lgkmcnt(0)")
    pre = [f"s_lshl_b32 s47, s40, 9", "s_lshl_b32 s48, s41, 8", "s_add_u32 s47, s47, s48", f"s_add_u32 s47, s47, {EP}",
           f"v_lshl_add_u32 v4, v12, 3, s47", "v_xor_b32 v7, 256, v4",
           f"v_lshlrev_b32 v6, 4, v13", f"v_add_u32 v6, {EP+1024}, v6"]
    for s in interleave(mfmas(FX), reads(FY, 1) + pre): a(s)
    a(f"""
    s_lshl_b32 s47, s41, 9
    v_add_u32 v5, s47, v6
    v_lshlrev_b32 v9, 3, v13
    v_add_u32 v9, {EP+1920}, v9
    v_add_u32 v8, s48, v9
    s_waitcnt lgkmcnt(0)
    s_barrier
    """)
    CV, STV, BR = FX, FX + 32, 240
    epr = [f"ds_read_b128 {Q4(CV+4*t)}, v{5 if t < 6 else 6} offset:{t*64}" for t in range(8)]
    epr += [f"ds_read_b64 {P2(STV+2*mt)}, v{4 if mt < 2 else 7} offset:{(mt&1)*128}" for mt in range(4)]
    epr += [f"ds_read_b64 {P2(BR+2*t)}, v{8 if t < 6 else 9} offset:{t*32}" for t in range(8)]
    for s in interleave(mfmas(FY), epr, start=2): a(s)
    st(1, 4)
    a(f"""
    s_lshl_b32 s48, s58, 3
    s_lshl_b32 s49, s40, 2
    s_add_u32 s48, s48, s49
    s_lshl_b32 s49, s41, 1
    s_add_u32 s48, s48, s49
    s_xor_b32 s49, s48, 2
    s_mul_i32 s48, s48, 112
    s_mul_i32 s49, s49, 112
    s_mul_i32 s50, s59, 7
    s_add_u32 s48, s48, s50
    s_add_u32 s49, s49, s50
    s_add_u32 s50, s48, 3
    s_lshl_b32 s51, s41, 2
    s_add_u32 s48, s48, s51
    s_add_u32 s49, s49, s51
    s_lshl_b32 s48, s48, 10
    s_lshl_b32 s49, s49, 10
    s_lshl_b32 s50, s50, 10
    s_add_u32 s48, s48, {ACT_OFF}
    s_add_u32 s49, s49, {ACT_OFF}
    s_add_u32 s50, s50, {ACT_OFF}
    s_lshl_b32 s51, s58, 1
    s_add_u32 s51, s51, s40
    s_lshl_b32 s51, s51, 1
    s_lshr_b32 s52, s59, 3
    s_add_u32 s51, s51, s52
    s_lshl_b32 s51, s51, 10
    s_and_b32 s52, s59, 7
    s_lshl_b32 s52, s52, 2
    s_add_u32 s51, s51, s52
    s_add_u32 s51, s51, {ST_OFF+64}
    v_mov_b32 v8, 0x3fb8aa3b
    s_waitcnt lgkmcnt(0)
    """)
    BV = FY
    for t in range(8):
        a(f"v_lshlrev_b32 v{BV+t*4+0}, 16, v{BR+2*t}")
        a(f"v_and_b32 v{BV+t*4+1}, 0xffff0000, v{BR+2*t}")
        a(f"v_lshlrev_b32 v{BV+t*4+2}, 16, v{BR+2*t+1}")
        a(f"v_and_b32 v{BV+t*4+3}, 0xffff0000, v{BR+2*t+1}")
    tmp = 208; PKO = 216
    pk = 0
    for mt in range(4):
        stv = STV + 2 * mt
        for p in range(4 if mt < 2 else 3):
            c = acc(mt, 2 * p); fo = 8 * p
            E = range(0, 8, 2)
            for i in E: a(f"v_pk_fma_f32 {P2(c+i)}, {P2(CV+fo+i)}, {P2(stv)}, {P2(c+i)} op_sel_hi:[1,0,1] neg_lo:[1,0,0] neg_hi:[1,0,0]")
            for i in E: a(f"v_pk_fma_f32 {P2(c+i)}, {P2(c+i)}, {P2(stv)}, {P2(BV+fo+i)} op_sel:[0,1,0]")
            for i in E: a(f"v_pk_mul_f32 {P2(tmp+i)}, {P2(c+i)}, v[8:9] op_sel_hi:[1,0]")
            for i in range(8): a(f"v_exp_f32 v{tmp+i}, v{tmp+i}")
            for i in E: a(f"v_pk_add_f32 {P2(tmp+i)}, {P2(tmp+i)}, 1.0 op_sel_hi:[1,0]")
            for i in E: a(f"v_pk_fma_f32 {P2(tmp+i)}, {P2(tmp+i)}, {P2(tmp+i)}, 1.0 op_sel_hi:[1,1,0]")
            for i in range(8): a(f"v_rcp_f32 v{tmp+i}, v{tmp+i}")
            for i in E: a(f"v_pk_fma_f32 {P2(tmp+i)}, {P2(tmp+i)}, -2.0, 1.0 op_sel_hi:[1,0,0]")
            for i in E: a(f"v_pk_mul_f32 {P2(c+i)}, {P2(c+i)}, {P2(tmp+i)}")
            d = PKO + (pk % 2) * 4; pk += 1
            for i in E: a(f"v_cvt_pk_bf16_f32 v{d+i//2}, v{c+i}, v{c+i+1}")
            if p < 3: a(f"buffer_store_dwordx4 {Q4(d)}, v3, {R(sWS)}, s{48 if mt < 2 else 49} offen offset:{p*1024} sc1")
            else: a(f"buffer_store_dwordx4 {Q4(d)}, v3, {R(sWS)}, s50 offen sc1")
        if mt == 0: a(f"s_add_u32 s48, s48, {112*1024}\ns_add_u32 s50, s50, {112*1024}")
        if mt == 2: a(f"s_add_u32 s49, s49, {112*1024}")
    st(1, 5); st(2, 1)
    a(f"""
    v_add_u32 v12, {TBL}, v3
    s_lshl_b32 s46, s3, 4
    s_add_u32 s46, s46, {PL}
    v_lshl_add_u32 v13, v2, 6, s46
    s_barrier
    """)
    M1, TWF, F, TWI, M1T, Dr, Di, IN, WC = 16, 48, 80, 112, 144, 176, 192, 208, 224
    Er, Ei = 16, 32
    ACC, YA, FX, FY, XR, RC = 16, 80, 112, 144, 176, 192
    bA, bB, bZ, bG = 240, 241, 245, 246
    cA, cB, cZ, cG = 224, 225, 229, 230
    vO = 247
    def rd(dst, q0, n): return [f"ds_read_b128 {Q4(dst+4*q)}, v12 offset:{(q0+q)*1024}" for q in range(n)]
    def mf(D, A, B, j):
        c = "0" if j == 0 else f"v[{D}:{D+15}]"
        return f"v_mfma_f32_32x32x16_bf16 v[{D}:{D+15}], {Q4(A+4*j)}, {Q4(B+4*j)}, {c}"
    def tw_mm(re, im, tc, ts, Or, Oi, K, data_is_A):
        for j in range(4):
            for r in (4 * j, 4 * j + 2):
                t0 = 4 + (r & 2) * 2; t1 = t0 + 2
                m = None
                if j > 0:
                    jj = j - 1; O, KK = (Or, K) if r == 4 * j else (Oi, K + 16)
                    m = mf(O, IN, KK, jj) if data_is_A else mf(O, KK, IN, jj)
                for q in range(2):
                    a(f"v_mul_f32 v{t0+q}, v{re+r+q}, v{tc+r+q}")
                    a(f"v_mul_f32 v{t1+q}, v{im+r+q}, v{tc+r+q}")
                    if m and q == 0: a(m)
                for q in range(2):
                    a(f"v_fmac_f32 v{t0+q}, v{im+r+q}, v{ts+r+q}")
                    a(f"v_fma_f32 v{t1+q}, -v{re+r+q}, v{ts+r+q}, v{t1+q}")
                a(f"v_cvt_pk_bf16_f32 v{IN+r}, v{t0}, v{t1}")
                a(f"v_cvt_pk_bf16_f32 v{IN+r+1}, v{t0+1}, v{t1+1}")
        a("s_nop 1")
        for O, KK in ((Or, K), (Oi, K + 16)):
            a(mf(O, IN, KK, 3) if data_is_A else mf(O, KK, IN, 3))
    def act_signal():
        a(f"""
        v_mov_b32 v4, 0
        s_waitcnt vmcnt(0)
        s_mov_b64 exec, 1
        buffer_atomic_add v14, v4, {R(sWS)}, s51 offen sc1
        s_mov_b64 exec, -1
        """)
        st(1, 6); st(2, 2)
    SIG = opt.get("sig", 1)
    for j in range(4): a(f"ds_read_b128 {Q4(IN+4*j)}, v13 offset:{j*4096}")
    for x in rd(M1, 0, 8): a(x)
    a("s_waitcnt lgkmcnt(0)")
    rest = rd(TWF, 8, 8) + rd(F, 16, 8) + [f"ds_read_b128 {Q4(WC+4*j)}, v13 offset:{16384+j*4096}" for j in range(4)] + rd(TWI, 24, 8) + rd(M1T, 32, 8)
    m1 = [mf(D, IN, M1 + o, j) for j in range(4) for D, o in ((Dr, 0), (Di, 16))]
    for x in interleave(m1, rest, per=3): a(x)
    a("s_waitcnt lgkmcnt(0)\ns_barrier")
    if SIG == 1: act_signal()
    tw_mm(Dr, Di, TWF, TWF + 16, Er, Ei, F, False)
    for r in range(16):
        a(f"v_lshlrev_b32 v{48+r}, 16, v{WC+r}")
        a(f"v_and_b32 v{64+r}, 0xffff0000, v{WC+r}")
    if SIG == 2: act_signal()
    tw_mm(Ei, Er, 48, 64, Dr, Di, F, True)
    a(f"""
    s_and_b32 s50, s2, 1                    ; u
    s_bfe_u32 s52, s2, 0x10001
    s_lshl_b32 s52, s52, 3
    s_and_b32 s53, s57, 7
    s_add_u32 s52, s52, s53                 ; tile_r
    s_bfe_u32 s53, s2, 0x10002
    s_lshl_b32 s53, s53, 2
    s_lshr_b32 s43, s57, 3
    s_add_u32 s53, s53, s43                 ; tile_c
    v_and_b32 v48, 15, v2                   ; i
    v_lshrrev_b32 v49, 4, v2                ; g
    s_lshl_b32 s60, s52, 6
    s_lshl_b32 s61, s50, 5
    s_add_u32 s60, s60, s61
    s_lshl_b32 s61, s40, 4
    s_add_u32 s60, s60, s61
    s_lshl_b32 s60, s60, 11
    s_lshl_b32 s61, s53, 7
    s_add_u32 s60, s60, s61
    s_lshl_b32 s61, s41, 6
    s_add_u32 s60, s60, s61
    s_add_u32 s61, s60, {1024*2048}
    v_lshlrev_b32 v50, 11, v48
    v_and_b32 v51, 1, v49
    v_lshl_add_u32 v50, v51, 5, v50
    v_lshrrev_b32 v51, 1, v49
    v_lshl_add_u32 v{vO}, v51, 4, v50
    s_lshl_b32 s43, s40, 11
    v_add_u32 v{bA}, s43, v3
    v_bfe_u32 v50, v2, 2, 2                 ; r
    v_and_b32 v51, 3, v2                    ; c
    v_lshl_add_u32 v52, v49, 2, v50
    v_and_b32 v53, 7, v52
    v_lshlrev_b32 v52, 8, v52
    v_lshl_add_u32 v52, v51, 3, v52
    v_add_u32 v52, 16384, v52
    s_lshl_b32 s43, s41, 1
    """)
    for tp in range(4):
        dl, dt = tp >> 1, tp & 1
        a(f"""
        s_add_u32 s44, s43, {dl*4+dt}
        v_xor_b32 v54, s44, v53
        v_lshl_add_u32 v{bB+tp}, v54, 5, v52
        """)
    tw_mm(Dr, Di, TWI, TWI + 16, Er, Ei, M1T, True)
    a(f"""
    v_lshl_add_u32 v52, v49, 3, v50
    v_lshlrev_b32 v52, 6, v52
    v_and_b32 v53, 1, v51
    v_lshlrev_b32 v53, 5, v53
    v_lshrrev_b32 v54, 1, v51
    v_lshl_add_u32 v53, v54, 3, v53
    s_lshl_b32 s44, s40, 4
    v_add_u32 v53, s44, v53
    v_and_b32 v54, 1, v49
    v_lshlrev_b32 v54, 4, v54
    v_xor_b32 v53, v53, v54
    v_add_u32 v{bZ}, v52, v53
    s_lshl_b32 s44, s41, 11
    s_add_u32 s44, s44, 16384
    v_add_u32 v{bG}, s44, v3
    s_and_b32 s49, s2, 7
    s_lshl_b32 s49, s49, 1
    s_bfe_u32 s43, s2, 0x10003
    s_add_u32 s49, s49, s43
    s_and_b32 s43, s2, 0xf0
    s_add_u32 s49, s49, s43
    s_lshl_b32 s49, s49, 2
    s_add_u32 s49, s49, s3                  ; job
    s_and_b32 s44, s49, 15
    s_bfe_u32 s45, s49, 0x50004
    s_and_b32 s46, s44, 1
    s_lshl_b32 s46, s46, 8
    s_lshr_b32 s44, s44, 1
    s_lshl_b32 s45, s45, 3
    s_add_u32 s44, s44, s45
    s_add_u32 s44, s44, s46                 ; cidx
    s_bfe_u32 s45, s44, 0x10002
    s_lshl_b32 s45, s45, 4
    s_lshl_b32 s44, s44, 7
    s_lshr_b32 s46, s49, 9
    s_lshl_b32 s46, s46, 16
    s_add_u32 s44, s44, s46
    s_add_u32 s44, s44, {Z_OFF}
    s_mul_i32 s46, s3, 4608
    s_add_u32 s46, s46, {ZS}
    v_and_b32 v4, 31, v2
    v_mul_u32_u24 v4, 144, v4
    v_lshrrev_b32 v5, 5, v2
    v_lshl_add_u32 v4, v5, 5, v4
    v_add_u32 v4, s46, v4
    v_add_u32 v249, s45, v4
    s_xor_b32 s45, s45, 16
    v_add_u32 v250, s45, v4
    v_lshrrev_b32 v4, 3, v2
    v_and_b32 v5, 7, v2
    v_mul_u32_u24 v6, 144, v4
    v_lshl_add_u32 v6, v5, 4, v6
    v_add_u32 v251, s46, v6
    v_lshlrev_b32 v4, 17, v4
    v_lshl_add_u32 v252, v5, 4, v4
    s_lshl_b32 s64, s2, 2
    s_add_u32 s64, s64, s3
    s_xor_b32 s65, s64, 4
    s_lshl_b32 s64, s64, 12
    s_lshl_b32 s65, s65, 12
    s_add_u32 s64, s64, {EX_OFF}
    s_add_u32 s65, s65, {EX_OFF}
    """)
    for r in range(8): a(f"v_cvt_pk_bf16_f32 v{56+r}, v{Er+2*r}, v{Er+2*r+1}")
    a("ds_write_b128 v249, v[56:59] offset:64\nds_write_b128 v250, v[60:63] offset:64")
    for r in range(8): a(f"v_cvt_pk_bf16_f32 v{48+r}, v{Ei+2*r}, v{Ei+2*r+1}")
    a("ds_write_b128 v249, v[48:51]\nds_write_b128 v250, v[52:55]")
    for r in range(16): a(f"v_mov_b32 v{YA+r}, 0")
    a("s_waitcnt lgkmcnt(0)")
    for t in range(4): a(f"ds_read_b128 {Q4(RC+4*t)}, v251 offset:{t*8*144}")
    for r in range(16, 32): a(f"v_mov_b32 v{YA+r}, 0")
    for r in range(4): a(f"v_mov_b32 v{RC+16+r}, -1")
    a("s_waitcnt lgkmcnt(0)")
    def setcur(dft):
        if not dft: return [f"v_add_u32 v{cA}, s62, v{bA}"] + [f"v_add_u32 v{cB+i}, s62, v{bB+i}" for i in range(4)]
        return [f"v_add_u32 v{cZ}, s62, v{bZ}", f"v_add_u32 v{cG}, s62, v{bG}"]
    def reads2(S_, kk):
        out = []
        for i in range(4):
            out.append(f"ds_read_b128 {Q4(S_+4*i)}, v{cA} offset:{i*4096+kk*1024}")
            for e in range(2):
                out.append(f"ds_read_b64_tr_b16 {P2(S_+16+4*i+2*e)}, v{cB+i} offset:{(32*kk+16*e)*256}")
        return out
    def mfmas2(S_, zero=False):
        out = []
        for m in range(4):
            for t in range(4):
                c = ACC + (m * 4 + t) * 4
                out.append(f"v_mfma_f32_16x16x32_bf16 {Q4(c)}, {Q4(S_+16+t*4)}, {Q4(S_+m*4)}, {'0' if zero else Q4(c)}")
        return out
    def dreads(S_, hf):
        out = []
        for q in range(2):
            kst = 2 * hf + q
            for ab in range(2):
                for e in range(2):
                    out.append(f"ds_read_b64_tr_b16 {P2(S_+16*q+4*ab+2*e)}, v{cZ} offset:{ab*8192+kst*2048+e*256}")
            for dt in range(2):
                out.append(f"ds_read_b128 {Q4(S_+16*q+8+4*dt)}, v{cG} offset:{kst*4096+dt*1024}")
        return out
    def dmfmas(S_, p):
        out = []
        for q in range(2):
            for ab in range(2):
                for dt in range(2):
                    c = YA + ((p * 2 + ab) * 2 + dt) * 4
                    out.append(f"v_mfma_f32_16x16x32_bf16 {Q4(c)}, {Q4(S_+16*q+8+4*dt)}, {Q4(S_+16*q+4*ab)}, {Q4(c)}")
        return out
    advs = [f"s_add_u32 s62, s62, {ST2}", f"s_and_b32 s62, s62, {ST2*4-1}"]
    def il(mf_, rdl, tail): return interleave(mf_[:6], rdl, per=2) + interleave(mf_[6:], tail)
    a(f"s_mov_b32 s62, 0\ns_mov_b32 s63, 1\ns_mov_b32 s47, {opt.get('j', [1])[0]}")
    for s in setcur(False): a(s)
    st(2, 3)
    a("s_barrier")
    st(2, 4)
    for s in reads2(FX, 0): a(s)
    a("s_waitcnt lgkmcnt(0)")
    for s in il(mfmas2(FX, True), reads2(FY, 1), advs + setcur(False)): a(s)
    a("s_waitcnt lgkmcnt(0)")
    a.label(name + "_dloop")
    a("s_barrier")
    a(f"s_cmp_eq_u32 s63, s47\ns_cbranch_scc1 {name}_jook")
    a.label(name + "_jack")
    for s in interleave(mfmas2(FY), reads2(FX, 0)): a(s)
    a("s_waitcnt lgkmcnt(0)")
    for s in il(mfmas2(FX), reads2(FY, 1), advs + setcur(False) + ["s_add_u32 s63, s63, 1", f"s_cmp_lt_u32 s63, {NMLP-1}"]): a(s)
    a(f"""
    s_waitcnt lgkmcnt(0)
    s_cbranch_scc1 {name}_dloop
    s_barrier
    """)
    for s in interleave(mfmas2(FY), reads2(FX, 0)): a(s)
    a("s_waitcnt lgkmcnt(0)")
    for s in il(mfmas2(FX), reads2(FY, 1), advs + setcur(True)): a(s)
    a("s_waitcnt lgkmcnt(0)\ns_barrier")
    mf_ = mfmas2(FY); mf_ = mf_[8:] + mf_[:8]
    for s in interleave(mf_, dreads(FX, 0)): a(s)
    st(2, 5)
    SN = RC + 16
    for t in range(8):
        c = ACC + 32 + 4 * t
        for q in range(2):
            a(f"v_cvt_pk_bf16_f32 v{SN+2*t+q}, v{c+2*q}, v{c+2*q+1}")
            a(f"v_min_u32 v{SN+2*t+q}, -2, v{SN+2*t+q}")
        if t % 2 == 1:
            a(f"buffer_store_dwordx4 {Q4(SN+2*t-2)}, v3, {R(sWS)}, s64 offen offset:{(t//2)*1024} sc1")
    def recv():
        for t in range(4): a(f"buffer_load_dwordx4 {Q4(RC+4*t)}, v3, {R(sWS)}, s65 offen offset:{t*1024} sc1")
    for it in range(NDFT):
        p = it // 4
        a("s_waitcnt lgkmcnt(0)")
        for s in interleave(dmfmas(FX, p), dreads(FY, 1) + advs, per=2): a(s)
        last = it == NDFT - 1
        if not last:
            for s in setcur(True): a(s)
        a("s_waitcnt lgkmcnt(0)")
        if not last: a("s_barrier")
        for s in interleave(dmfmas(FY, p), [] if last else dreads(FX, 0), per=2): a(s)
        if it == POLL_IT: recv()
        if it == 2:
            for t in range(0, 8, 2):
                a(f"v_permlane16_swap_b32 v{XR+2*t}, v{XR+2*t+2}")
                a(f"v_permlane16_swap_b32 v{XR+2*t+1}, v{XR+2*t+3}")
            for t in range(8):
                a(f"""
                v_lshlrev_b32 v4, 16, v{XR+2*t}
                v_and_b32 v5, 0xffff0000, v{XR+2*t}
                v_lshlrev_b32 v6, 16, v{XR+2*t+1}
                v_and_b32 v7, 0xffff0000, v{XR+2*t+1}
                v_pk_add_f32 {P2(ACC+4*t)}, {P2(ACC+4*t)}, v[4:5]
                v_pk_add_f32 {P2(ACC+4*t+2)}, {P2(ACC+4*t+2)}, v[6:7]
                """)
    a("s_nop 7")
    def Y(p, ab, dt, r): return YA + ((p * 2 + ab) * 2 + dt) * 4 + r
    for dt in range(2):
        for r in range(0, 4, 2):
            a(f"""
            v_pk_add_f32 v[4:5], {P2(Y(0,0,dt,r))}, {P2(Y(1,0,dt,r))}
            v_pk_add_f32 v[6:7], {P2(Y(0,0,dt,r))}, {P2(Y(1,0,dt,r))} neg_lo:[0,1] neg_hi:[0,1]
            v_pk_add_f32 v[8:9], {P2(Y(0,1,dt,r))}, {P2(Y(1,1,dt,r))}
            v_pk_add_f32 v[10:11], {P2(Y(0,1,dt,r))}, {P2(Y(1,1,dt,r))} neg_lo:[0,1] neg_hi:[0,1]
            """)
            for rho in range(2):
                for dl in range(2):
                    c = ACC + (rho * 4 + dl * 2 + dt) * 4 + r
                    a(f"v_pk_add_f32 {P2(c)}, {P2(c)}, {P2(4+2*dl)}")
                    a(f"v_pk_add_f32 {P2(c)}, {P2(c)}, {P2(8+2*dl)}" + (" neg_lo:[0,1] neg_hi:[0,1]" if rho else ""))
    Lp = name + "_poll"; Lok = name + "_ok"
    a.label(Lp)
    a("s_waitcnt vmcnt(0)")
    a(f"v_max3_u32 v4, v{RC}, v{RC+1}, v{RC+2}")
    for t in range(3, 15, 2): a(f"v_max3_u32 v4, v4, v{RC+t}, v{RC+t+1}")
    a(f"v_max_u32 v4, v4, v{RC+15}")
    a(f"v_cmp_eq_u32 vcc, -1, v4\ns_nop 4\ns_cbranch_vccz {Lok}")
    recv()
    a(f"s_branch {Lp}")
    a.label(Lok)
    for t in range(8):
        c = ACC + 4 * t
        a(f"""
        v_lshlrev_b32 v4, 16, v{RC+2*t}
        v_and_b32 v5, 0xffff0000, v{RC+2*t}
        v_lshlrev_b32 v6, 16, v{RC+2*t+1}
        v_and_b32 v7, 0xffff0000, v{RC+2*t+1}
        v_pk_add_f32 {P2(c)}, {P2(c)}, v[4:5]
        v_pk_add_f32 {P2(c+2)}, {P2(c+2)}, v[6:7]
        v_cvt_pk_bf16_f32 v{SN+2*t}, v{c}, v{c+1}
        v_cvt_pk_bf16_f32 v{SN+2*t+1}, v{c+2}, v{c+3}
        """)
        if t % 2 == 1:
            rho, dl = t >> 2, (t >> 1) & 1
            d = SN + 2 * t - 2
            a(f"""
            s_nop 1
            v_permlane16_swap_b32 v{d}, v{d+2}
            v_permlane16_swap_b32 v{d+1}, v{d+3}
            buffer_store_dwordx4 {Q4(d)}, v{vO}, {R(sOUT)}, s{60+rho} offen offset:{dl*1024} {opt.get('opol','')}
            """)
    if stamp == 2:
        a("s_waitcnt vmcnt(0)"); S.st(6)
    if stamp in (1, 2): S.out(7)
    a.label(L_end)
    a("s_endpgm")
    hooks = [
        (1, [f"ds_read_b128 {Q4(240+4*e)}, v{vPR} offset:{e*16*272}" for e in range(4)] +
            [f"buffer_store_dwordx4 v[236:239], v3, {R(sWS)}, s68 offen sc1"]),
        (2, sum([[f"buffer_store_dwordx4 {Q4(240+4*e)}, v{vST}, {R(sWS)}, s50 offen sc1", f"s_add_u32 s50, s50, {32*32768}"] for e in range(4)], [])),
        (3, ["ds_read_b128 v[4:7], v10"]),
        (4, ["C0", f"buffer_store_dwordx4 v[4:7], v3, {R(sWS)}, s53 offen sc1"]),
        (PUBK - 1, ["s_waitcnt vmcnt(0)"]),
        (PUBK, ["C0", "s_mov_b64 exec, 1", f"buffer_atomic_add v14, v15, {R(sDBG)}, 0 offen sc1", "s_mov_b64 exec, -1"]),
    ]
    VPF = opt.get("vpf", [9, 9, 9, 9, 11, 11, 11])
    hd = {}
    for it, body in hooks: hd[it] = body
    for n_, it in enumerate(VPF):
        pf = [f"s_cmp_lg_u32 s3, {n_ & 3}", f"s_cbranch_scc1 {name}_pf{n_}", f"s_mov_b32 s45, {n_*8*2048}",
              f"buffer_load_dword v235, v234, {R(sW2)}, s45 offen {opt.get('pfpol','')}", f"{name}_pf{n_}:"]
        old = hd.get(it, [])
        if old and old[0].startswith("s_waitcnt"): hd[it] = old + pf
        else: hd[it] = pf + old
    hooks = sorted(hd.items())
    a.label(name + "_hook")
    for i, (it, body) in enumerate(hooks):
        nx = hooks[i + 1][0] if i + 1 < len(hooks) else 99
        if i + 1 < len(hooks): a(f"s_cmp_eq_u32 s47, {it}\ns_cbranch_scc0 {name}_hk{i+1}")
        a(f"s_mov_b32 s48, {nx}")
        for x in body:
            if x == "C0": a(f"s_cmp_lg_u32 s3, 0\ns_cbranch_scc1 {name}_back")
            else: a(x)
        a(f"s_branch {name}_back")
        if i + 1 < len(hooks): a.label(f"{name}_hk{i+1}")
    J = opt.get("j", [1, 2, 3])
    jh = [
        (J[0], sum([[f"buffer_store_dwordx4 {Q4(RC+4*t)}, v252, {R(sWS)}, s44 offen sc1", f"s_add_u32 s44, s44, {8*131072}"] for t in range(4)], [])),
        (J[1], [f"buffer_store_dwordx4 {Q4(RC+16)}, v3, {R(sWS)}, s65 offen offset:{t*1024} sc1" for t in range(4)]),
        (J[2], [f"buffer_load_dwordx4 {Q4(XR+8*rho+4*dl)}, v{vO}, {R(sX)}, s{60+rho} offen offset:{dl*1024}" for rho in range(2) for dl in range(2)]),
        (HK, ["s_waitcnt vmcnt(0)"]),
        (HK + 1, ["C0", "s_mov_b64 exec, 1", f"buffer_atomic_add v14, v15, {R(sDBG)}, 0 offen offset:128 sc1", "s_mov_b64 exec, -1"]),
    ]
    a.label(name + "_jook")
    for i, (it, body) in enumerate(jh):
        nx = jh[i + 1][0] if i + 1 < len(jh) else 99
        if i + 1 < len(jh): a(f"s_cmp_eq_u32 s63, {it}\ns_cbranch_scc0 {name}_jk{i+1}")
        a(f"s_mov_b32 s47, {nx}")
        for x in body:
            if x == "C0": a(f"s_cmp_lg_u32 s3, 0\ns_cbranch_scc1 {name}_jack")
            else: a(x)
        a(f"s_branch {name}_jack")
        if i + 1 < len(jh): a.label(f"{name}_jk{i+1}")
```

```python
import sys, json
from asmlib import *
import tables2, mk
NAME = "parallel_sum__spectral_gfnet__dense_activation_mish__prompt_kernel"
opt = json.loads(sys.argv[2]) if len(sys.argv) > 2 else {}
a = Asm()
hdr = open("parallel_sum__spectral_gfnet__dense_activation_mish__prompt.s.ref").read().split("\n")
for ln in hdr[:11]: a.raw(ln)
if opt.get("single"):
    nm = NAME
    a.raw(f"; @launch grid=(256,1,1) block=(512,1,1) lds={mk.LDS_BYTES}")
else:
    nm = "mk_kernel"
    a.raw(f"; @launch kernel=mk_kernel grid=(256,1,1) block=(512,1,1) lds={mk.LDS_BYTES}")
a.raw('.amdgcn_target "amdgcn-amd-amdhsa--gfx950"')
a.raw(".text")
d = mk.gen_mk(a, nm, opt)
a.raw('.section .rodata,"a"')
a.raw(d)
tables2.emit(a, "fft_tab")
open(sys.argv[1], "w").write(a.text())
```
